```python
import torch

def _softmax(x, axis=-1):
    return torch.softmax(x, dim=axis)
def _gelu(x):
    return torch.nn.functional.gelu(x, approximate="tanh")
def _silu(x):
    return torch.nn.functional.silu(x)
def _sigmoid(x):
    return torch.sigmoid(x)
def _layernorm(x, axis=-1, eps=1e-5):
    m = x.mean(dim=axis, keepdim=True)
    v = x.var(dim=axis, keepdim=True, unbiased=False)
    return (x - m) / torch.sqrt(v + eps)
def _scatter_add(tgt, idx, src, axis=0):
    return tgt.clone().index_add_(axis, idx, src)
def _segment_sum(src, seg, n):
    out = torch.zeros((n,) + src.shape[1:], dtype=src.dtype)
    return out.index_add_(0, seg, src)
def _pad(x, pw):
    flat = tuple(v for pair in reversed(pw) for v in pair)
    return torch.nn.functional.pad(x, flat)

kernel_name = 'recurrent_scan__ssm_conv_s5__dense_activation_silu__prompt'

def setup_inputs():

    _w = (lambda a: (lambda t: t.to(torch.bfloat16) if t.is_floating_point() else t)(torch.as_tensor(a)))
    def _A_setup():
        B, S, D = 1, 2048, 512
        P = D
        Lambda_re = -0.5 * (lambda _x: torch.exp(torch.as_tensor(_x)))((lambda *s: torch.randn(*s, dtype=torch.bfloat16) * 0.8)(P))
        Lambda_im = (lambda *s: torch.randn(*s, dtype=torch.bfloat16) * 0.8)(P) * 1.0
        B_re = (lambda *s: torch.randn(*s, dtype=torch.bfloat16) * 0.8)(P, D) * (D ** -0.5)
        B_im = (lambda *s: torch.randn(*s, dtype=torch.bfloat16) * 0.8)(P, D) * (D ** -0.5)
        C_re = (lambda *s: torch.randn(*s, dtype=torch.bfloat16) * 0.8)(D, P) * (P ** -0.5)
        C_im = (lambda *s: torch.randn(*s, dtype=torch.bfloat16) * 0.8)(D, P) * (P ** -0.5)
        log_dt = (lambda *s: torch.randn(*s, dtype=torch.bfloat16) * 0.8)(P) * 0.3 - 2.0
        Dskip = (lambda *s: torch.randn(*s, dtype=torch.bfloat16) * 0.8)(D)
        return {
            "x": _w((lambda *s: torch.randn(*s, dtype=torch.bfloat16) * 0.05)(B, S, D)),
            "Lambda_re": _w(Lambda_re),
            "Lambda_im": _w(Lambda_im),
            "B_re": _w(B_re),
            "B_im": _w(B_im),
            "C_re": _w(C_re),
            "C_im": _w(C_im),
            "log_dt": _w(log_dt),
            "Dskip": _w(Dskip),
        }
    _A_in = _A_setup()

    def _B_setup():
        B, S, D, F = 1, 2048, 512, 1792
        return {
            "x": _w((lambda *s: torch.randn(*s, dtype=torch.bfloat16) * 0.05)(B, S, D)),
            "w1": _w((lambda *s: torch.randn(*s, dtype=torch.bfloat16) * 0.8)(D, F) * (D ** -0.5)),
            "w2": _w((lambda *s: torch.randn(*s, dtype=torch.bfloat16) * 0.2)(F, D) * (F ** -0.5)),
        }
    _B_in = _B_setup()

    return {
        "A_x": _A_in["x"],
        "A_Lambda_re": _A_in["Lambda_re"],
        "A_Lambda_im": _A_in["Lambda_im"],
        "A_B_re": _A_in["B_re"],
        "A_B_im": _A_in["B_im"],
        "A_C_re": _A_in["C_re"],
        "A_C_im": _A_in["C_im"],
        "A_log_dt": _A_in["log_dt"],
        "A_Dskip": _A_in["Dskip"],
        "B_x": _B_in["x"],
        "B_w1": _B_in["w1"],
        "B_w2": _B_in["w2"],
    }

def reference(A_x, A_Lambda_re, A_Lambda_im, A_B_re, A_B_im, A_C_re, A_C_im, A_log_dt, A_Dskip, B_x, B_w1, B_w2):
    def _A_ref(x, Lambda_re, Lambda_im, B_re, B_im, C_re, C_im, log_dt, Dskip):
        Bsz, L, H = x.shape
        Lam = Lambda_re + 1j * Lambda_im
        Bmat = B_re + 1j * B_im
        Cmat = C_re + 1j * C_im
        dt = torch.exp(log_dt)
        Lam_bar = torch.exp(dt * Lam)
        B_bar = ((Lam_bar - 1.0) / Lam)[:, None] * Bmat
        Bu = torch.einsum("bld,pd->blp", x + 0j, B_bar)
        h = torch.zeros_like(Bu[:, 0, :])
        hs = []
        for t in range(L):
            h = Lam_bar[None, :] * h + Bu[:, t, :]
            hs.append(h)
        hseq = torch.stack(hs, 1)
        y = 2.0 * torch.einsum("blp,dp->bld", hseq, Cmat).real + x * Dskip[None, None, :]
        return y

    def _B_ref(x, w1, w2):
        h = torch.einsum("bsd,df->bsf", x, w1)
        h = _silu(h)
        out = torch.einsum("bsf,fd->bsd", h, w2)
        return out

    x = A_x
    xn = _layernorm(x, axis=-1)
    s = _A_ref(xn, A_Lambda_re, A_Lambda_im, A_B_re, A_B_im, A_C_re, A_C_im, A_log_dt, A_Dskip)
    g = _silu(_B_ref(xn, B_w1, B_w2))
    return x + s * g
```

```python
import re

_REG = re.compile(r'\b([vas])(?:\[(\d+):(\d+)\]|(\d+))')

def regs_of(tok):
    out = set()
    tok = tok.strip()
    for m in _REG.finditer(tok):
        k = m.group(1)
        if m.group(2) is not None:
            for i in range(int(m.group(2)), int(m.group(3)) + 1):
                out.add((k, i))
        else:
            out.add((k, int(m.group(4))))
    if re.search(r'\bvcc\b', tok):
        out.add(('s', 'vcc'))
    if re.search(r'\bm0\b', tok):
        out.add(('s', 'm0'))
    if re.search(r'\bexec(_lo|_hi)?\b', tok):
        out.add(('s', 'exec'))
    return out

def split_ops(s):
    ops, depth, cur = [], 0, ''
    for ch in s:
        if ch == '[': depth += 1
        if ch == ']': depth -= 1
        if ch == ',' and depth == 0:
            ops.append(cur.strip()); cur = ''
        else:
            cur += ch
    if cur.strip():
        ops.append(cur.strip())
    return ops

TRANS = ('v_exp_f32', 'v_log_f32', 'v_rcp_f32', 'v_rsq_f32', 'v_sqrt_f32', 'v_sin_f32', 'v_cos_f32', 'v_rcp_iflag_f32')

class Ins:
    __slots__ = ('text', 'mn', 'cls', 'dst', 'src', 'srcC', 'passes', 'states', 'wide_store_data', 'is_trans', 'dpp', 'sdst')
    def __init__(self, text):
        self.text = text
        t = text.split(';')[0].strip()
        parts = t.split(None, 1)
        mn = parts[0]
        self.mn = mn
        rest = parts[1] if len(parts) > 1 else ''
        ops = split_ops(rest)
        self.dst = set(); self.src = set(); self.srcC = set(); self.passes = 0
        self.states = 1; self.wide_store_data = set(); self.is_trans = False; self.dpp = False; self.sdst = set()
        if mn == 's_nop':
            self.cls = 'nop'; self.states = int(ops[0], 0) + 1
        elif mn.startswith('v_mfma'):
            self.cls = 'mfma'
            self.dst = regs_of(ops[0]); self.src = regs_of(ops[1]) | regs_of(ops[2]); self.srcC = regs_of(ops[3])
            self.passes = 8 if '32x32x16' in mn else 4
        elif mn.startswith('v_'):
            self.cls = 'valu'
            self.dpp = ('dpp' in t) or ('quad_perm' in t) or ('row_' in t)
            self.is_trans = any(mn.startswith(x) for x in TRANS)
            d = regs_of(ops[0])
            if mn.startswith('v_cmp') or mn.startswith('v_readfirstlane') or mn.startswith('v_readlane'):
                self.sdst = d
                for o in ops[1:]: self.src |= regs_of(o)
            elif mn.startswith('v_permlane'):
                self.dst = d | regs_of(ops[1]); self.src = set(self.dst)
            else:
                self.dst = d
                rest_ops = ops[1:]
                if mn.startswith(('v_add_co', 'v_sub_co', 'v_addc_co', 'v_subb_co')):
                    self.sdst = regs_of(ops[1]); rest_ops = ops[2:]
                for o in rest_ops: self.src |= regs_of(o)
                if mn.startswith(('v_fmac', 'v_dot2c', 'v_pk_fmac')): self.src |= d
                if mn.startswith('v_cndmask') and len(ops) == 3: self.src.add(('s', 'vcc'))
        elif mn.startswith('ds_read') or mn.startswith('ds_bpermute') or mn.startswith('ds_swizzle'):
            self.cls = 'ds'; self.dst = regs_of(ops[0])
            for o in ops[1:]: self.src |= regs_of(o)
        elif mn.startswith('ds_'):
            self.cls = 'ds'
            for o in ops: self.src |= regs_of(o)
        elif mn.startswith(('buffer_', 'global_')):
            self.cls = 'vmem'
            is_lds = re.search(r'\blds\b', t) is not None
            if 'load' in mn and not is_lds:
                self.dst = regs_of(ops[0])
                for o in ops[1:]: self.src |= regs_of(o)
            else:
                for o in ops: self.src |= regs_of(o)
                if is_lds: self.src.add(('s', 'm0'))
                if 'store' in mn and ('x4' in mn or 'x3' in mn):
                    self.wide_store_data = regs_of(ops[0]) if mn.startswith('buffer') else regs_of(ops[1])
                if 'atomic' in mn and ('sc0' in t):
                    self.dst = regs_of(ops[0])
        elif mn.startswith('s_'):
            self.cls = 'salu'
            if ops and not mn.startswith(('s_cmp', 's_waitcnt', 's_barrier', 's_branch', 's_cbranch', 's_endpgm', 's_setprio', 's_sleep')):
                self.sdst = regs_of(ops[0])
                for o in ops[1:]: self.src |= regs_of(o)
            else:
                for o in ops: self.src |= regs_of(o)
        else:
            raise ValueError("unknown instruction: " + text)

def need(prev, cur):
    n = 0
    isv = lambda r: r[0] in ('v', 'a')
    if prev.cls == 'valu' and prev.mn.startswith('v_dot'):
        if cur.cls in ('valu', 'mfma', 'ds', 'vmem') and prev.dst & (cur.src | cur.dst | cur.srcC):
            same_c = False
            if cur.mn == prev.mn:
                ops = split_ops(cur.text.split(None, 1)[1])
                ab = regs_of(ops[1]) | regs_of(ops[2])
                same_c = not (prev.dst & ab)
            if not same_c: n = max(n, 3)
    if prev.cls == 'valu':
        if cur.cls == 'mfma' and prev.dst & (cur.src | cur.srcC): n = max(n, 2)
        if cur.cls == 'valu':
            if prev.is_trans and not cur.is_trans and prev.dst & cur.src: n = max(n, 1)
            if prev.is_trans and cur.is_trans and prev.dst & cur.src: n = max(n, 1)
            if cur.mn.startswith('v_permlane') and prev.dst & cur.src: n = max(n, 2)
            if cur.dpp and prev.dst & cur.src: n = max(n, 2)
            if cur.mn.startswith(('v_readfirstlane', 'v_readlane')) and prev.dst & cur.src: n = max(n, 1)
            if prev.sdst & cur.src: n = max(n, 2)
        if cur.cls == 'vmem' and prev.sdst & cur.src: n = max(n, 5)
        if cur.cls == 'salu' and prev.sdst & cur.src: n = max(n, 1)
    if prev.cls == 'mfma':
        big = {4: 8, 8: 12}[prev.passes]
        if cur.cls == 'mfma':
            if prev.dst & cur.src: n = max(n, big)
            if prev.dst & cur.srcC and not (prev.dst == cur.srcC and prev.passes == cur.passes):
                n = max(n, {4: 6, 8: 10}[prev.passes])
            if prev.dst & cur.dst and not (prev.dst == cur.srcC):
                n = max(n, big)
        elif cur.cls in ('valu', 'ds', 'vmem'):
            if prev.dst & (cur.src | cur.dst): n = max(n, big)
            if cur.cls == 'valu' and prev.srcC & cur.dst: n = max(n, {4: 3, 8: 7}[prev.passes])
    if prev.cls == 'vmem' and prev.wide_store_data:
        if cur.cls == 'valu' and prev.wide_store_data & cur.dst: n = max(n, 2)
        elif cur.cls in ('ds', 'vmem', 'mfma') and prev.wide_store_data & cur.dst: n = max(n, 1)
    if prev.cls == 'salu' and ('s', 'm0') in prev.sdst and cur.cls == 'vmem' and ('s', 'm0') in cur.src:
        n = max(n, 1)
    return n

class Asm:
    def __init__(self):
        self.lines = []
        self.hist = []
        self.count = 0
    def raw(self, s):
        self.lines.append(s)
    def label(self, name):
        self.lines.append(name + ':')
        self.flush()
    def flush(self, n=12):
        worst = 0
        dist = 0
        for p in reversed(self.hist):
            if p.cls == 'mfma':
                worst = max(worst, {4: 8, 8: 12}[p.passes] - dist)
            elif p.cls == 'valu':
                worst = max(worst, (5 if p.sdst else 2) - dist)
            dist += p.states
            if dist > 20: break
        if worst > 0:
            self._nop(worst)
        self.hist = []
    def _nop(self, n):
        while n > 0:
            k = min(n, 16)
            self.lines.append(f'    s_nop {k-1}')
            self.hist.append(Ins(f's_nop {k-1}'))
            self.count += 1
            n -= k
    def __call__(self, text):
        for ln in text.strip('\n').split('\n'):
            ln = ln.strip()
            if not ln or ln.startswith(';'):
                if ln: self.lines.append('    ' + ln)
                continue
            if ln.endswith(':'):
                self.label(ln[:-1]); continue
            cur = Ins(ln)
            dist = 0; pad = 0
            for p in reversed(self.hist):
                r = need(p, cur)
                if r > dist: pad = max(pad, r - dist)
                dist += p.states
                if dist >= 20: break
            if pad: self._nop(pad)
            self.lines.append('    ' + ln)
            self.hist.append(cur)
            self.count += 1
            if len(self.hist) > 40: self.hist = self.hist[-30:]
            if cur.mn.startswith(('s_cbranch', 's_branch')):
                pass
    def text(self):
        return '\n'.join(self.lines) + '\n'
```

```python
import sys
from asmlib import Asm

NAME = "recurrent_scan__ssm_conv_s5__dense_activation_silu__prompt"
WS_H1 = 0
WS_HH = 0x800000
WS_E = 0xC00000
WS_ST = 0xC10000
WS_SIZE = 0xC20000
LOG2E = 0x3fb8aa3b
INV2PI = "0.15915494309189535"

def vr(b, n=1):
    return f"v{b}" if n == 1 else f"v[{b}:{b+n-1}]"
def ar(b, n=1):
    return f"a{b}" if n == 1 else f"a[{b}:{b+n-1}]"

def set_exec(a, m):
    a(f"s_mov_b32 exec_lo, {hex(m & 0xffffffff)}")
    a(f"s_mov_b32 exec_hi, {hex((m >> 32) & 0xffffffff)}")

def srd(a, s, lo, hi, size):
    a(f"s_mov_b32 s{s}, s{lo}")
    a(f"s_mov_b32 s{s+1}, s{hi}")
    a(f"s_mov_b32 s{s+2}, {size}")
    a(f"s_mov_b32 s{s+3}, 0x20000")

def cexp(a, dr, di, zr2, zi2, n, t0, t1):
    if isinstance(n, str):
        a(f"v_mul_f32 {vr(t0)}, {n}, {vr(zr2)}")
        a(f"v_mul_f32 {vr(t1)}, {n}, {vr(zi2)}")
    elif n == 1:
        a(f"v_mov_b32 {vr(t0)}, {vr(zr2)}")
        a(f"v_mov_b32 {vr(t1)}, {vr(zi2)}")
    else:
        import struct
        lit = hex(struct.unpack('<I', struct.pack('<f', float(n)))[0])
        a(f"v_mul_f32 {vr(t0)}, {lit}, {vr(zr2)}")
        a(f"v_mul_f32 {vr(t1)}, {lit}, {vr(zi2)}")
    a(f"v_exp_f32 {vr(t0)}, {vr(t0)}")
    a(f"v_fract_f32 {vr(t1)}, {vr(t1)}")
    a(f"v_cos_f32 {vr(dr)}, {vr(t1)}")
    a(f"v_sin_f32 {vr(di)}, {vr(t1)}")
    a(f"v_mul_f32 {vr(dr)}, {vr(dr)}, {vr(t0)}")
    a(f"v_mul_f32 {vr(di)}, {vr(di)}, {vr(t0)}")

def red4(a, v, t):
    a(f"v_mov_b32 {vr(t)}, {vr(v)}")
    a(f"v_permlane16_swap_b32 {vr(v)}, {vr(t)}")
    a(f"v_add_f32 {vr(v)}, {vr(v)}, {vr(t)}")
    a(f"v_mov_b32 {vr(t)}, {vr(v)}")
    a(f"v_permlane32_swap_b32 {vr(v)}, {vr(t)}")
    a(f"v_add_f32 {vr(v)}, {vr(v)}, {vr(t)}")

def silu_bf16(a, vals, tmp):
    for v in vals:
        a(f"v_cvt_pk_bf16_f32 {vr(v)}, 0, {vr(v)}")
    for v, t in zip(vals, tmp):
        a(f"v_mul_f32 {vr(t)}, 0xbfb8aa3b, {vr(v)}")
    for v, t in zip(vals, tmp):
        a(f"v_exp_f32 {vr(t)}, {vr(t)}")
    for v, t in zip(vals, tmp):
        a(f"v_add_f32 {vr(t)}, 1.0, {vr(t)}")
    for v, t in zip(vals, tmp):
        a(f"v_rcp_f32 {vr(t)}, {vr(t)}")
    for v, t in zip(vals, tmp):
        a(f"v_mul_f32 {vr(v)}, {vr(v)}, {vr(t)}")

def gen_k1():
    a = Asm()
    XA = lambda fa, kb: 128 + (fa * 16 + kb) * 4
    BU = lambda fa, T: 96 + (fa * 4 + T) * 4
    FA = lambda fa, T: (fa * 7 + T) * 4
    WF = lambda buf, k: 64 + buf * 16 + k * 4
    vL, vI, vQ, vX0, vX1, vT0, vT1, vT2, vT3 = 1, 2, 3, 4, 5, 6, 7, 8, 9
    vBrd = 10
    vTR = [11, 12, 13, 14]
    vZR = [16, 17]; vZI = [18, 19]; vLre = [20, 21]; vLim = [22, 23]
    vLr = [24, 25]; vLi = [26, 27]
    vCr = [28, 29]; vCi = [30, 31]
    vP = 32
    TMP = 40
    sW, sC, sG = 3, 4, 5
    SX, SB, SW_, SWS = 40, 44, 48, 52
    a(f"s_cmp_ge_u32 s2, 256")
    a(f"s_cbranch_scc1 K1_END")
    a("s_load_dwordx16 s[16:31], s[0:1], 0")
    a("s_load_dwordx4 s[32:35], s[0:1], 80")
    a("s_load_dwordx4 s[36:39], s[0:1], 104")
    a(f"v_lshrrev_b32 {vr(vT0)}, 6, v0")
    a(f"v_readfirstlane_b32 s{sW}, {vr(vT0)}")
    a(f"v_and_b32 {vr(vL)}, 63, v0")
    a(f"v_and_b32 {vr(vI)}, 15, v0")
    a(f"v_lshrrev_b32 {vr(vQ)}, 4, {vr(vL)}")
    a("s_and_b32 s6, s2, 6")
    a("s_lshl_b32 s6, s6, 1")
    a("s_lshr_b32 s7, s2, 3")
    a("s_and_b32 s7, s7, 3")
    a(f"s_add_u32 s{sC}, s6, s7")
    a("s_and_b32 s6, s2, 1")
    a("s_lshl_b32 s6, s6, 3")
    a("s_lshr_b32 s7, s2, 5")
    a(f"s_add_u32 s{sG}, s6, s7")
    a(f"v_lshrrev_b32 {vr(vT0)}, 2, {vr(vI)}")
    a(f"v_lshlrev_b32 {vr(vT0)}, 3, {vr(vT0)}")
    a(f"v_and_b32 {vr(vT1)}, 3, {vr(vI)}")
    a(f"v_add_u32 {vr(vT0)}, {vr(vT0)}, {vr(vT1)}")
    a(f"s_lshl_b32 s6, s{sW}, 5")
    a(f"v_add_u32 {vr(vT0)}, s6, {vr(vT0)}")
    a(f"v_lshlrev_b32 {vr(vX0)}, 10, {vr(vT0)}")
    a(f"v_lshl_add_u32 {vr(vX0)}, {vr(vQ)}, 4, {vr(vX0)}")
    a(f"v_add_u32 {vr(vX1)}, 0x1000, {vr(vX0)}")
    a(f"v_lshlrev_b32 {vr(vBrd)}, 4, {vr(vL)}")
    a(f"s_lshl_b32 s8, s{sC}, 17")
    a("s_waitcnt lgkmcnt(0)")
    srd(a, SX, 16, 17, 2097152)
    a(f"s_cmp_lt_u32 s{sW}, 2")
    a(f"s_cselect_b32 s{SB}, s22, s24")
    a(f"s_cselect_b32 s{SB+1}, s23, s25")
    a(f"s_mov_b32 s{SB+2}, 524288")
    a(f"s_mov_b32 s{SB+3}, 0x20000")
    srd(a, SW_, 32, 33, 1835008)
    srd(a, SWS, 38, 39, WS_SIZE)
    a(f"s_lshl_b32 s6, s{sG}, 6")
    a(f"v_lshl_add_u32 {vr(vT1)}, {vr(vI)}, 2, s6")
    a(f"global_load_dword {vr(TMP)}, {vr(vT1)}, s[18:19]")
    a(f"global_load_dword {vr(TMP+1)}, {vr(vT1)}, s[20:21]")
    a(f"global_load_dword {vr(TMP+2)}, {vr(vT1)}, s[30:31]")
    for fa in range(2):
        for kb in range(16):
            a(f"buffer_load_dwordx4 {vr(XA(fa,kb),4)}, {vr(vX0 if fa==0 else vX1)}, s[{SX}:{SX+3}], s8 offen offset:{64*kb}")
    a(f"s_and_b32 s6, s{sW}, 1")
    a(f"s_lshl_b32 s7, s{sG}, 5")
    a(f"s_add_u32 s6, s6, s7")
    a(f"v_lshl_add_u32 {vr(vT0)}, {vr(vI)}, 1, s6")
    a(f"v_lshlrev_b32 {vr(vT0)}, 10, {vr(vT0)}")
    a(f"v_lshl_add_u32 {vr(vT0)}, {vr(vQ)}, 4, {vr(vT0)}")
    a(f"s_lshl_b32 s6, s{sW}, 14")
    for kb in range(16):
        a(f"s_add_u32 m0, s6, {960*kb}")
        a(f"buffer_load_dwordx4 {vr(vT0)}, s[{SB}:{SB+3}], 0 offen offset:{64*kb} lds")
    a(f"v_lshlrev_b32 {vr(vT1)}, 2, {vr(vQ)}")
    a(f"v_xor_b32 {vr(vT1)}, {vr(vT1)}, {vr(vI)}")
    a(f"v_cmp_gt_u32 vcc, 14, {vr(vT1)}")
    a(f"v_cndmask_b32 {vr(vT1)}, 0, {vr(vT1)}, vcc")
    a(f"v_lshlrev_b32 {vr(vT1)}, 4, {vr(vT1)}")
    a(f"s_movk_i32 s6, 3584")
    a(f"v_mul_lo_u32 {vr(vT2)}, {vr(vQ)}, s6")
    a(f"v_add_u32 {vr(vT1)}, {vr(vT1)}, {vr(vT2)}")
    a(f"s_mul_i32 s6, s{sG}, 224")
    a(f"v_add_u32 {vr(vT3)}, s6, {vr(vT1)}")
    vW1 = 15
    a(f"v_mov_b32 {vr(vW1)}, {vr(vT3)}")
    def w1_dma(half, region):
        a(f"s_mul_i32 s9, s{sW}, 14336")
        if half: a(f"s_add_u32 s9, s9, {256*3584}")
        a(f"s_lshl_b32 s10, s{sW}, 10")
        for n in range(16):
            a(f"s_add_u32 m0, s10, {region + 4096*n}")
            a(f"buffer_load_dwordx4 {vr(vW1)}, s[{SW_}:{SW_+3}], s9 offen lds")
            if n < 15: a(f"s_add_u32 s9, s9, {4*14336}")
    a("s_waitcnt vmcnt(16)")
    w1_dma(0, 65536)
    for e in range(2):
        sh = (lambda d, s: a(f"v_lshlrev_b32 {vr(d)}, 16, {vr(s)}")) if e == 0 else (lambda d, s: a(f"v_and_b32 {vr(d)}, 0xffff0000, {vr(s)}"))
        sh(vLre[e], TMP); sh(vLim[e], TMP+1); sh(vT0, TMP+2)
        a(f"v_mul_f32 {vr(vT0)}, {hex(LOG2E)}, {vr(vT0)}")
        a(f"v_exp_f32 {vr(vT0)}, {vr(vT0)}")
        a(f"v_cvt_pk_bf16_f32 {vr(vT0)}, 0, {vr(vT0)}")
        a(f"v_mul_f32 {vr(vZR[e])}, {vr(vT0)}, {vr(vLre[e])}")
        a(f"v_mul_f32 {vr(vZI[e])}, {vr(vT0)}, {vr(vLim[e])}")
        a(f"v_mul_f32 {vr(vZR[e])}, {hex(LOG2E)}, {vr(vZR[e])}")
        a(f"v_mul_f32 {vr(vZI[e])}, {INV2PI}, {vr(vZI[e])}")
        cexp(a, vLr[e], vLi[e], vZR[e], vZI[e], 1, vT0, vT1)
        a(f"v_add_f32 {vr(vT0)}, -1.0, {vr(vLr[e])}")
        a(f"v_mul_f32 {vr(vT1)}, {vr(vLre[e])}, {vr(vLre[e])}")
        a(f"v_fmac_f32 {vr(vT1)}, {vr(vLim[e])}, {vr(vLim[e])}")
        a(f"v_rcp_f32 {vr(vT1)}, {vr(vT1)}")
        a(f"v_mul_f32 {vr(vCr[e])}, {vr(vT0)}, {vr(vLre[e])}")
        a(f"v_fmac_f32 {vr(vCr[e])}, {vr(vLi[e])}, {vr(vLim[e])}")
        a(f"v_mul_f32 {vr(vCi[e])}, {vr(vLi[e])}, {vr(vLre[e])}")
        a(f"v_fma_f32 {vr(vCi[e])}, -{vr(vT0)}, {vr(vLim[e])}, {vr(vCi[e])}")
        a(f"v_mul_f32 {vr(vCr[e])}, {vr(vCr[e])}, {vr(vT1)}")
        a(f"v_mul_f32 {vr(vCi[e])}, {vr(vCi[e])}, {vr(vT1)}")
    a("s_mov_b32 s11, 0x3f803f80")
    for fa in range(2):
        acc = [TMP, TMP+1, TMP+2, TMP+3]
        for k in range(4): a(f"v_mov_b32 {vr(acc[k])}, 0")
        for kb in range(16):
            for d in range(4):
                a(f"v_dot2_f32_bf16 {vr(acc[d])}, {vr(XA(fa,kb)+d)}, s11, {vr(acc[d])}")
        a(f"v_add_f32 {vr(acc[0])}, {vr(acc[0])}, {vr(acc[1])}")
        a(f"v_add_f32 {vr(acc[2])}, {vr(acc[2])}, {vr(acc[3])}")
        a(f"v_add_f32 {vr(acc[0])}, {vr(acc[0])}, {vr(acc[2])}")
        red4(a, acc[0], acc[1])
        nm = TMP + 4
        nb = TMP + 6
        a(f"v_mul_f32 {vr(nm)}, 0xbb000000, {vr(acc[0])}")
        a(f"v_mov_b32 {vr(nm+1)}, {vr(nm)}")
        a(f"v_cvt_pk_bf16_f32 {vr(nb)}, 0, {vr(nm)}")
        a(f"v_mov_b32 {vr(nb+1)}, {vr(nb)}")
        sq = [TMP + 8, TMP + 10]
        for s in sq:
            a(f"v_mov_b32 {vr(s)}, 0"); a(f"v_mov_b32 {vr(s+1)}, 0")
        U = [TMP + 12, TMP + 14, TMP + 16, TMP + 18]; D = [TMP + 20, TMP + 22]
        for kb in range(16):
            for d in range(4):
                w = XA(fa, kb) + d; u = U[d]; dd = D[d & 1]; s = sq[d & 1]
                a(f"v_lshlrev_b32 {vr(u)}, 16, {vr(w)}")
                a(f"v_and_b32 {vr(u+1)}, 0xffff0000, {vr(w)}")
                a(f"v_pk_add_f32 {vr(dd,2)}, {vr(u,2)}, {vr(nm,2)}")
                a(f"v_pk_add_f32 {vr(u,2)}, {vr(u,2)}, {vr(nb,2)}")
                a(f"v_pk_fma_f32 {vr(s,2)}, {vr(dd,2)}, {vr(dd,2)}, {vr(s,2)}")
                a(f"v_cvt_pk_bf16_f32 {vr(w)}, {vr(u)}, {vr(u+1)}")
        a(f"v_pk_add_f32 {vr(sq[0],2)}, {vr(sq[0],2)}, {vr(sq[1],2)}")
        a(f"v_add_f32 {vr(sq[0])}, {vr(sq[0])}, {vr(sq[0]+1)}")
        red4(a, sq[0], sq[1])
        rs = TMP + 8
        a(f"v_mul_f32 {vr(rs)}, 0x3b000000, {vr(sq[0])}")
        a(f"v_cvt_pk_bf16_f32 {vr(rs)}, 0, {vr(rs)}")
        a(f"v_add_f32 {vr(rs)}, 0x3727c5ac, {vr(rs)}")
        a(f"v_cvt_pk_bf16_f32 {vr(rs)}, 0, {vr(rs)}")
        a(f"v_sqrt_f32 {vr(rs)}, {vr(rs)}")
        a(f"v_cvt_pk_bf16_f32 {vr(rs)}, 0, {vr(rs)}")
        a(f"v_rcp_f32 {vr(rs)}, {vr(rs)}")
        a(f"v_mov_b32 {vr(rs+1)}, {vr(rs)}")
        a.flush()
        a(f"s_cmp_lg_u32 s{sG}, 0")
        a(f"s_cbranch_scc1 K1_NOST{fa}")
        a(f"v_mov_b32 {vr(TMP+10)}, {vr(nb)}")
        a(f"v_mov_b32 {vr(TMP+11)}, {vr(rs)}")
        a(f"v_lshrrev_b32 {vr(TMP+12)}, 7, {vr(vX0 if fa==0 else vX1)}")
        a(f"s_lshl_b32 s6, s{sC}, 10")
        a(f"s_add_u32 s6, s6, {WS_ST}")
        set_exec(a, 0xffff)
        a(f"buffer_store_dwordx2 {vr(TMP+10,2)}, {vr(TMP+12)}, s[{SWS}:{SWS+3}], s6 offen")
        a(f"s_mov_b64 exec, -1")
        a(f"K1_NOST{fa}:")
        for kb in range(16):
            for d in range(4):
                w = XA(fa, kb) + d; u = U[d]
                a(f"v_lshlrev_b32 {vr(u)}, 16, {vr(w)}")
                a(f"v_and_b32 {vr(u+1)}, 0xffff0000, {vr(w)}")
                a(f"v_pk_mul_f32 {vr(u,2)}, {vr(u,2)}, {vr(rs,2)}")
                a(f"v_cvt_pk_bf16_f32 {vr(w)}, {vr(u)}, {vr(u+1)}")
    for r in range(32): a(f"v_mov_b32 {vr(96+r)}, 0")
    for r in range(56): a(f"v_accvgpr_write_b32 {ar(r)}, 0")
    a("s_waitcnt vmcnt(16)")
    a("s_barrier")
    def bu_reads(kb):
        for T in range(4):
            a(f"ds_read_b128 {vr(WF(kb&1,T),4)}, {vr(vBrd)} offset:{(T*16+kb)*1024}")
    bu_reads(0)
    for kb in range(16):
        if kb < 15:
            bu_reads(kb+1)
            a("s_waitcnt lgkmcnt(4)")
        else:
            a("s_waitcnt lgkmcnt(0)")
        for T in range(4):
            for fa in range(2):
                a(f"v_mfma_f32_16x16x32_bf16 {vr(BU(fa,T),4)}, {vr(XA(fa,kb),4)}, {vr(WF(kb&1,T),4)}, {vr(BU(fa,T),4)}")
    a("s_waitcnt vmcnt(0)")
    a("s_barrier")
    w1_dma(1, 0)
    RE = lambda e, t: BU(t >> 2, e) + (t & 3)
    IM = lambda e, t: BU(t >> 2, 2 + e) + (t & 3)
    for t in range(1, 8):
        for e in range(2):
            a(f"v_fmac_f32 {vr(RE(e,t))}, {vr(vLr[e])}, {vr(RE(e,t-1))}")
            a(f"v_fmac_f32 {vr(IM(e,t))}, {vr(vLr[e])}, {vr(IM(e,t-1))}")
        for e in range(2):
            a(f"v_fma_f32 {vr(RE(e,t))}, -{vr(vLi[e])}, {vr(IM(e,t-1))}, {vr(RE(e,t))}")
            a(f"v_fmac_f32 {vr(IM(e,t))}, {vr(vLi[e])}, {vr(RE(e,t-1))}")
    SCR = 131072
    a(f"v_mov_b32 {vr(TMP)}, {vr(RE(0,7))}")
    a(f"v_mov_b32 {vr(TMP+1)}, {vr(IM(0,7))}")
    a(f"v_mov_b32 {vr(TMP+2)}, {vr(RE(1,7))}")
    a(f"v_mov_b32 {vr(TMP+3)}, {vr(IM(1,7))}")
    a(f"s_lshl_b32 s6, s{sW}, 10")
    a(f"s_add_u32 s6, s6, {SCR}")
    a(f"v_add_u32 {vr(vT0)}, s6, {vr(vBrd)}")
    a(f"ds_write_b128 {vr(vT0)}, {vr(TMP,4)}")
    L8 = [TMP+4, TMP+5, TMP+6, TMP+7]
    for e in range(2):
        cexp(a, L8[2*e], L8[2*e+1], vZR[e], vZI[e], 8, vT1, vT2)
    for k in range(4): a(f"v_mov_b32 {vr(vP+k)}, 0")
    a(f"v_lshlrev_b32 {vr(vT1)}, 4, {vr(vI)}")
    a(f"v_add_u32 {vr(vT1)}, {SCR}, {vr(vT1)}")
    a(f"v_add_u32 {vr(vT2)}, s6, {vr(vI)}")
    a(f"v_lshlrev_b32 {vr(vT2)}, 4, {vr(vI)}")
    a(f"v_add_u32 {vr(vT2)}, s6, {vr(vT2)}")
    a("s_waitcnt lgkmcnt(0)")
    a("s_barrier")
    def horner(S):
        for e in range(2):
            pr, pi, lr, li = vP+2*e, vP+2*e+1, L8[2*e], L8[2*e+1]
            sr, si = S+2*e, S+2*e+1
            a(f"v_fmac_f32 {vr(sr)}, {vr(lr)}, {vr(pr)}")
            a(f"v_fmac_f32 {vr(si)}, {vr(lr)}, {vr(pi)}")
            a(f"v_fma_f32 {vr(sr)}, -{vr(li)}, {vr(pi)}, {vr(sr)}")
            a(f"v_fmac_f32 {vr(si)}, {vr(li)}, {vr(pr)}")
            a(f"v_mov_b32 {vr(pr)}, {vr(sr)}")
            a(f"v_mov_b32 {vr(pi)}, {vr(si)}")
    for blk in range(3):
        a.flush()
        a(f"s_cmp_le_u32 s{sW}, {blk}")
        a(f"s_cbranch_scc1 K1_PFX_DONE")
        for k in range(4):
            a(f"ds_read_b128 {vr(TMP+8+4*k,4)}, {vr(vT1)} offset:{(4*blk+k)*256}")
        for k in range(4):
            a(f"s_waitcnt lgkmcnt({3-k})")
            horner(TMP+8+4*k)
    a("K1_PFX_DONE:")
    for k in range(3):
        a(f"ds_read_b128 {vr(TMP+8+4*k,4)}, {vr(vT2)} offset:{k*256}")
    for k in range(3):
        a(f"s_waitcnt lgkmcnt({2-k})")
        set_exec(a, (~((1 << (16*(k+1))) - 1)) & 0xffffffffffffffff)
        horner(TMP+8+4*k)
    a("s_mov_b64 exec, -1")
    a.flush()
    a(f"s_cmp_lg_u32 s{sW}, 3")
    a(f"s_cbranch_scc1 K1_NOPUB")
    for e in range(2):
        pr, pi, lr, li = vP+2*e, vP+2*e+1, L8[2*e], L8[2*e+1]
        sr, si = TMP+2*e, TMP+2*e+1
        a(f"v_fmac_f32 {vr(sr)}, {vr(lr)}, {vr(pr)}")
        a(f"v_fmac_f32 {vr(si)}, {vr(lr)}, {vr(pi)}")
        a(f"v_fma_f32 {vr(sr)}, -{vr(li)}, {vr(pi)}, {vr(sr)}")
        a(f"v_fmac_f32 {vr(si)}, {vr(li)}, {vr(pr)}")
    a(f"v_lshlrev_b32 {vr(vT1)}, 4, {vr(vI)}")
    a(f"s_lshl_b32 s6, s{sC}, 12")
    a(f"s_lshl_b32 s7, s{sG}, 8")
    a(f"s_add_u32 s6, s6, s7")
    a(f"s_add_u32 s6, s6, {WS_E}")
    set_exec(a, 0xffff000000000000)
    a(f"buffer_store_dwordx4 {vr(TMP,4)}, {vr(vT1)}, s[{SWS}:{SWS+3}], s6 offen sc1")
    a(f"s_mov_b64 exec, 1")
    a("s_waitcnt vmcnt(0)")
    a(f"s_lshl_b32 s6, 1, s{sC}")
    a(f"v_mov_b32 {vr(vT1)}, s6")
    a(f"s_lshl_b32 s7, s{sG}, 2")
    a(f"v_mov_b32 {vr(vT2)}, s7")
    a(f"global_atomic_or {vr(vT2)}, {vr(vT1)}, s[36:37] sc1")
    a(f"s_mov_b64 exec, -1")
    a("K1_NOPUB:")
    a(f"v_bfe_u32 {vr(vT0)}, {vr(vL)}, 2, 2")
    a(f"v_and_b32 {vr(vT1)}, 3, {vr(vL)}")
    a(f"v_lshl_add_u32 {vr(vT2)}, {vr(vQ)}, 3, {vr(vT0)}")
    a(f"v_lshlrev_b32 {vr(vT2)}, 8, {vr(vT2)}")
    for pr in range(4):
        a(f"v_xor_b32 {vr(vT3)}, {pr}, {vr(vT0)}")
        a(f"v_lshlrev_b32 {vr(vT3)}, 6, {vr(vT3)}")
        a(f"v_add_u32 {vr(vTR[pr])}, {vr(vT2)}, {vr(vT3)}")
        if pr < 3:
            a(f"v_lshl_add_u32 {vr(vTR[pr])}, {vr(vT1)}, 4, {vr(vTR[pr])}")
        else:
            a(f"v_lshl_add_u32 {vr(vTR[pr])}, {vr(vT1)}, 3, {vr(vTR[pr])}")
        a(f"v_add_u32 {vr(vTR[pr])}, 0x10000, {vr(vTR[pr])}")
    def ffn_half(half):
        def rd(kb, grp):
            tiles = range(0, 4) if grp == 0 else range(4, 7)
            for n, T in enumerate(tiles):
                pr, hf = T >> 1, T & 1
                off = 8192 * kb + 8 * hf
                d = WF(grp, n)
                a(f"ds_read_b64_tr_b16 {vr(d,2)}, {vr(vTR[pr])} offset:{off}")
                a(f"ds_read_b64_tr_b16 {vr(d+2,2)}, {vr(vTR[pr])} offset:{off+1024}")
        def mm(kb, grp):
            tiles = range(0, 4) if grp == 0 else range(4, 7)
            for n, T in enumerate(tiles):
                for fa in range(2):
                    a(f"v_mfma_f32_16x16x32_bf16 {ar(FA(fa,T),4)}, {vr(WF(grp,n),4)}, {vr(XA(fa,half*8+kb),4)}, {ar(FA(fa,T),4)}")
        rd(0, 0)
        for kb in range(8):
            rd(kb, 1)
            a("s_waitcnt lgkmcnt(6)")
            mm(kb, 0)
            if kb < 7:
                rd(kb+1, 0)
                a("s_waitcnt lgkmcnt(8)")
            else:
                a("s_waitcnt lgkmcnt(0)")
            mm(kb, 1)
    ffn_half(0)
    for pr in range(4):
        a(f"v_add_u32 {vr(vTR[pr])}, 0xffff0000, {vr(vTR[pr])}")
    a("s_waitcnt vmcnt(0)")
    a("s_barrier")
    ffn_half(1)
    a(f"v_lshrrev_b32 {vr(vT0)}, 10, {vr(vX0)}")
    a(f"s_movk_i32 s6, 3584")
    a(f"v_mul_lo_u32 {vr(vT0)}, {vr(vT0)}, s6")
    a(f"v_lshl_add_u32 {vr(vT1)}, {vr(vQ)}, 4, {vr(vT0)}")
    a(f"v_lshl_add_u32 {vr(vT2)}, {vr(vQ)}, 3, {vr(vT0)}")
    a(f"s_mul_i32 s6, s{sC}, {128*3584}")
    a(f"s_mul_i32 s7, s{sG}, 224")
    a(f"s_add_u32 s6, s6, s7")
    a(f"s_add_u32 s7, s6, {4*3584}")
    V = list(range(64, 72)); Tm = list(range(72, 80)); O = [80, 84]
    cnt = 0
    for fa in range(2):
        for pr in range(4):
            n = 8 if pr < 3 else 4
            vals = V[:n]
            for k in range(n):
                T = 2*pr + (k >> 2)
                a(f"v_accvgpr_read_b32 {vr(vals[k])}, {ar(FA(fa,T) + (k&3))}")
            silu_bf16(a, vals, Tm[:n])
            o = O[cnt & 1]; cnt += 1
            for k in range(n // 2):
                a(f"v_cvt_pk_bf16_f32 {vr(o+k)}, {vr(vals[2*k])}, {vr(vals[2*k+1])}")
            so = "s6" if fa == 0 else "s7"
            if pr < 3:
                a(f"buffer_store_dwordx4 {vr(o,4)}, {vr(vT1)}, s[{SWS}:{SWS+3}], {so} offen offset:{64*pr}")
            else:
                a(f"buffer_store_dwordx2 {vr(o,2)}, {vr(vT2)}, s[{SWS}:{SWS+3}], {so} offen offset:192")
    G = 64
    for k in range(4): a(f"v_mov_b32 {vr(G+k)}, 0")
    a.flush()
    a(f"s_cmp_eq_u32 s{sC}, 0")
    a(f"s_cbranch_scc1 K1_GDONE")
    a(f"s_lshl_b32 s6, 1, s{sC}")
    a(f"s_sub_u32 s6, s6, 1")
    a(f"s_lshl_b32 s7, s{sG}, 2")
    a(f"v_mov_b32 {vr(vT0)}, s7")
    a("s_mov_b32 s12, 0")
    a("K1_POLL:")
    a("s_add_u32 s12, s12, 1")
    a("s_cmp_gt_u32 s12, 0x100000")
    a("s_cbranch_scc1 K1_POLL_OK")
    a(f"global_load_dword {vr(vT1)}, {vr(vT0)}, s[36:37] sc1")
    a("s_waitcnt vmcnt(0)")
    a(f"v_readfirstlane_b32 s7, {vr(vT1)}")
    a("s_and_b32 s7, s7, s6")
    a("s_cmp_eq_u32 s7, s6")
    a("s_cbranch_scc1 K1_POLL_OK")
    a("s_sleep 2")
    a("s_branch K1_POLL")
    a("K1_POLL_OK:")
    a(f"v_lshlrev_b32 {vr(vT1)}, 4, {vr(vI)}")
    a(f"s_lshl_b32 s7, s{sG}, 8")
    a(f"s_add_u32 s7, s7, {WS_E}")
    EB = 128
    for cp in range(15):
        a(f"buffer_load_dwordx4 {vr(EB+4*cp,4)}, {vr(vT1)}, s[{SWS}:{SWS+3}], s7 offen sc1")
        a(f"s_add_u32 s7, s7, 4096")
        a(f"s_cmp_eq_u32 s{sC}, {cp+1}")
        a(f"s_cbranch_scc1 K1_ELD")
    a("K1_ELD:")
    L128 = [68, 69, 70, 71]
    for e in range(2):
        cexp(a, L128[2*e], L128[2*e+1], vZR[e], vZI[e], 128, vT2, vT3)
    a("s_waitcnt vmcnt(0)")
    for cp in range(15):
        S = EB + 4*cp
        for e in range(2):
            pr_, pi_, lr, li = G+2*e, G+2*e+1, L128[2*e], L128[2*e+1]
            sr, si = S+2*e, S+2*e+1
            a(f"v_fmac_f32 {vr(sr)}, {vr(lr)}, {vr(pr_)}")
            a(f"v_fmac_f32 {vr(si)}, {vr(lr)}, {vr(pi_)}")
            a(f"v_fma_f32 {vr(sr)}, -{vr(li)}, {vr(pi_)}, {vr(sr)}")
            a(f"v_fmac_f32 {vr(si)}, {vr(li)}, {vr(pr_)}")
            a(f"v_mov_b32 {vr(pr_)}, {vr(sr)}")
            a(f"v_mov_b32 {vr(pi_)}, {vr(si)}")
        a.flush()
        a(f"s_cmp_eq_u32 s{sC}, {cp+1}")
        a(f"s_cbranch_scc1 K1_GDONE")
    a("K1_GDONE:")
    a(f"v_lshlrev_b32 {vr(vT0)}, 3, {vr(vQ)}")
    a(f"s_lshl_b32 s6, s{sW}, 5")
    a(f"v_add_u32 {vr(vT0)}, s6, {vr(vT0)}")
    a(f"v_cvt_f32_u32 {vr(vT0)}, {vr(vT0)}")
    LJ = [68, 69, 70, 71]
    for e in range(2):
        cexp(a, LJ[2*e], LJ[2*e+1], vZR[e], vZI[e], vr(vT0), vT2, vT3)
    for e in range(2):
        pr_, pi_, lr, li, gr, gi = vP+2*e, vP+2*e+1, LJ[2*e], LJ[2*e+1], G+2*e, G+2*e+1
        a(f"v_fmac_f32 {vr(pr_)}, {vr(lr)}, {vr(gr)}")
        a(f"v_fmac_f32 {vr(pi_)}, {vr(lr)}, {vr(gi)}")
        a(f"v_fma_f32 {vr(pr_)}, -{vr(li)}, {vr(gi)}, {vr(pr_)}")
        a(f"v_fmac_f32 {vr(pi_)}, {vr(li)}, {vr(gr)}")
    a(f"v_lshlrev_b32 {vr(vT0)}, 14, {vr(vQ)}")
    a(f"v_lshl_add_u32 {vr(vT0)}, {vr(vI)}, 2, {vr(vT0)}")
    a(f"s_lshl_b32 s6, s{sC}, 18")
    a(f"s_lshl_b32 s7, s{sW}, 16")
    a(f"s_add_u32 s6, s6, s7")
    a(f"s_lshl_b32 s7, s{sG}, 6")
    a(f"s_add_u32 s6, s6, s7")
    a(f"s_add_u32 s6, s6, {WS_HH}")
    CN = [72, 73, 74, 75]; HR = [76, 77]; HI = [78, 79]; OUT = 80
    for t in range(8):
        for e in range(2):
            pr_, pi_ = vP+2*e, vP+2*e+1
            nr, ni = CN[2*e], CN[2*e+1]
            a(f"v_mul_f32 {vr(nr)}, {vr(vLr[e])}, {vr(pr_)}")
            a(f"v_mul_f32 {vr(ni)}, {vr(vLr[e])}, {vr(pi_)}")
            a(f"v_fma_f32 {vr(nr)}, -{vr(vLi[e])}, {vr(pi_)}, {vr(nr)}")
            a(f"v_fmac_f32 {vr(ni)}, {vr(vLi[e])}, {vr(pr_)}")
        for e in range(2):
            pr_, pi_ = vP+2*e, vP+2*e+1
            nr, ni = CN[2*e], CN[2*e+1]
            a(f"v_mov_b32 {vr(pr_)}, {vr(nr)}")
            a(f"v_mov_b32 {vr(pi_)}, {vr(ni)}")
            a(f"v_add_f32 {vr(RE(e,t))}, {vr(RE(e,t))}, {vr(nr)}")
            a(f"v_add_f32 {vr(IM(e,t))}, {vr(IM(e,t))}, {vr(ni)}")
        for e in range(2):
            a(f"v_mul_f32 {vr(HR[e])}, {vr(vCr[e])}, {vr(RE(e,t))}")
            a(f"v_mul_f32 {vr(HI[e])}, -{vr(vCr[e])}, {vr(IM(e,t))}")
            a(f"v_fma_f32 {vr(HR[e])}, -{vr(vCi[e])}, {vr(IM(e,t))}, {vr(HR[e])}")
            a(f"v_fma_f32 {vr(HI[e])}, -{vr(vCi[e])}, {vr(RE(e,t))}, {vr(HI[e])}")
        o = OUT + 2 * (t & 3)
        a(f"v_cvt_pk_bf16_f32 {vr(o)}, {vr(HR[0])}, {vr(HR[1])}")
        a(f"v_cvt_pk_bf16_f32 {vr(o+1)}, {vr(HI[0])}, {vr(HI[1])}")
        if t == 2 or t == 4 or t == 6:
            a(f"s_add_u32 s6, s6, 4096")
        a(f"buffer_store_dword {vr(o)}, {vr(vT0)}, s[{SWS}:{SWS+3}], s6 offen offset:{2048*(t&1)}")
        a(f"buffer_store_dword {vr(o+1)}, {vr(vT0)}, s[{SWS}:{SWS+3}], s6 offen offset:{2048*(t&1)+1024}")
    a("K1_END:")
    a("s_endpgm")
    return a

def gen_k2():
    a = Asm()
    NS = 8
    sW = 3
    SA_H, SA_F, SCR_, SCI, SW2, SX, SO, SWS = 40, 44, 48, 52, 56, 60, 64, 68
    vL, vT0, vT1, vT2, vT3 = 1, 2, 3, 4, 5
    vDAh = [6, 7]; vDAf = [8, 9]; vDC = [10, 11]; vDW = [12, 13]
    vRA = [[16, 17, 18, 19], [20, 21, 22, 23]]
    vRB = [[24, 25, 26, 27], [28, 29, 30, 31]]
    vRW = [32, 33]
    FRA = lambda f: 64 + 4 * f
    FRB = lambda f: 80 + 4 * f
    ACCY, ACCF = 96, 112
    a("s_cmp_ge_u32 s2, 256")
    a("s_cbranch_scc1 K2_END")
    a("s_load_dwordx16 s[16:31], s[0:1], 0")
    a("s_load_dwordx2 s[32:33], s[0:1], 64")
    a("s_load_dwordx4 s[36:39], s[0:1], 88")
    a("s_load_dwordx2 s[34:35], s[0:1], 112")
    a(f"v_lshrrev_b32 {vr(vT0)}, 6, v0")
    a(f"v_readfirstlane_b32 s{sW}, {vr(vT0)}")
    a(f"v_and_b32 {vr(vL)}, 63, v0")
    a("s_and_b32 s6, s2, 7")
    a("s_lshl_b32 s6, s6, 2")
    a("s_lshr_b32 s7, s2, 3")
    a("s_and_b32 s7, s7, 3")
    a("s_add_u32 s4, s6, s7")
    a("s_lshr_b32 s5, s2, 5")
    a(f"v_lshrrev_b32 {vr(vT0)}, 3, {vr(vL)}")
    a(f"s_lshl_b32 s6, s{sW}, 4")
    a(f"v_add_u32 {vr(vT0)}, s6, {vr(vT0)}")
    a(f"v_and_b32 {vr(vT1)}, 7, {vr(vL)}")
    a(f"v_lshrrev_b32 {vr(vT2)}, 4, {vr(vL)}")
    a(f"s_movk_i32 s7, 3584")
    for n in range(2):
        a(f"v_add_u32 {vr(vT3)}, {4*n}, {vr(vT2)}")
        a(f"v_xor_b32 {vr(vT3)}, {vr(vT3)}, {vr(vT1)}")
        a(f"v_lshlrev_b32 {vr(vT3)}, 4, {vr(vT3)}")
        a(f"v_add_u32 {vr(vDW[n])}, {8*n}, {vr(vT0)}")
        a(f"v_lshl_add_u32 {vr(vDAh[n])}, {vr(vDW[n])}, 11, {vr(vT3)}")
        a(f"v_lshl_add_u32 {vr(vDC[n])}, {vr(vDW[n])}, 10, {vr(vT3)}")
        a(f"v_mul_lo_u32 {vr(vDAf[n])}, {vr(vDW[n])}, s7")
        a(f"v_add_u32 {vr(vDAf[n])}, {vr(vDAf[n])}, {vr(vT3)}")
        a(f"v_and_b32 {vr(vT3)}, 1, {vr(vT2)}")
        a(f"v_lshlrev_b32 {vr(vT3)}, 2, {vr(vT3)}")
        a(f"v_xor_b32 {vr(vT3)}, {vr(vT3)}, {vr(vT1)}")
        a(f"v_lshlrev_b32 {vr(vT3)}, 4, {vr(vT3)}")
        a(f"v_lshl_add_u32 {vr(vDW[n])}, {vr(vDW[n])}, 10, {vr(vT3)}")
    a(f"s_lshr_b32 s6, s{sW}, 1")
    a(f"s_lshl_b32 s6, s6, 5")
    a(f"s_and_b32 s7, s{sW}, 1")
    a(f"s_lshl_b32 s7, s7, 5")
    a(f"v_and_b32 {vr(vT0)}, 31, {vr(vL)}")
    a(f"v_lshrrev_b32 {vr(vT1)}, 5, {vr(vL)}")
    a(f"v_bfe_u32 {vr(vT2)}, {vr(vL)}, 1, 3")
    a(f"v_xor_b32 {vr(vT2)}, {vr(vT2)}, {vr(vT1)}")
    a(f"v_lshlrev_b32 {vr(vT2)}, 4, {vr(vT2)}")
    a(f"v_lshl_add_u32 {vr(vT2)}, {vr(vT0)}, 7, {vr(vT2)}")
    a(f"s_lshl_b32 s8, s6, 7")
    a(f"s_lshl_b32 s9, s7, 7")
    a(f"s_add_u32 s9, s9, 8192")
    for f in range(4):
        a(f"v_xor_b32 {vr(vT3)}, {32*f}, {vr(vT2)}")
        a(f"v_add_u32 {vr(vRA[0][f])}, s8, {vr(vT3)}")
        a(f"v_add_u32 {vr(vRB[0][f])}, s9, {vr(vT3)}")
        a(f"v_add_u32 {vr(vRA[1][f])}, 0x10000, {vr(vRA[0][f])}")
        a(f"v_add_u32 {vr(vRB[1][f])}, 0x10000, {vr(vRB[0][f])}")
    a(f"v_bfe_u32 {vr(vT0)}, {vr(vL)}, 2, 2")
    a(f"v_lshl_add_u32 {vr(vT1)}, {vr(vT1)}, 3, {vr(vT0)}")
    a(f"v_lshlrev_b32 {vr(vT1)}, 7, {vr(vT1)}")
    a(f"v_bfe_u32 {vr(vT2)}, {vr(vL)}, 4, 1")
    a(f"v_lshlrev_b32 {vr(vT2)}, 1, {vr(vT2)}")
    a(f"v_bfe_u32 {vr(vT3)}, {vr(vL)}, 1, 1")
    a(f"v_add_u32 {vr(vT2)}, {vr(vT2)}, {vr(vT3)}")
    a(f"s_lshr_b32 s7, s7, 3")
    a(f"v_add_u32 {vr(vT2)}, s7, {vr(vT2)}")
    a(f"v_bfe_u32 {vr(vT3)}, {vr(vL)}, 3, 1")
    a(f"v_lshlrev_b32 {vr(vT3)}, 2, {vr(vT3)}")
    a(f"v_xor_b32 {vr(vT2)}, {vr(vT2)}, {vr(vT3)}")
    a(f"v_lshl_add_u32 {vr(vT1)}, {vr(vT2)}, 4, {vr(vT1)}")
    a(f"v_and_b32 {vr(vT3)}, 1, {vr(vL)}")
    a(f"v_lshl_add_u32 {vr(vT1)}, {vr(vT3)}, 3, {vr(vT1)}")
    a(f"v_add_u32 {vr(vRW[0])}, 8192, {vr(vT1)}")
    a(f"v_add_u32 {vr(vRW[1])}, 0x12000, {vr(vT1)}")
    for r in range(32): a(f"v_mov_b32 {vr(96+r)}, 0")
    a("s_waitcnt lgkmcnt(0)")
    srd(a, SWS, 34, 35, WS_SIZE)
    srd(a, SCR_, 26, 27, 524288)
    srd(a, SCI, 28, 29, 524288)
    srd(a, SW2, 36, 37, 1835008)
    srd(a, SX, 16, 17, 2097152)
    srd(a, SO, 38, 39, 4194304)
    a(f"s_lshl_b32 s10, s4, 17")
    a(f"s_add_u32 s10, s10, {WS_HH}")
    a(f"s_mul_i32 s11, s4, {64*3584}")
    a(f"s_lshl_b32 s12, s5, 16")
    a(f"s_lshl_b32 s13, s5, 7")
    a(f"s_lshl_b32 s14, s{sW}, 11")
    NCH = 44
    def dma(ch):
        slot = ch % NS
        base = slot * 16384
        if ch < 16:
            for n in range(2):
                a(f"s_add_u32 m0, s14, {base + 1024*n}")
                a(f"s_add_u32 s15, s10, {128*ch}")
                a(f"buffer_load_dwordx4 {vr(vDAh[n])}, s[{SWS}:{SWS+3}], s15 offen lds")
            S = SCR_ if ch < 8 else SCI
            for n in range(2):
                a(f"s_add_u32 m0, s14, {base + 8192 + 1024*n}")
                a(f"s_add_u32 s15, s12, {128*(ch&7)}")
                a(f"buffer_load_dwordx4 {vr(vDC[n])}, s[{S}:{S+3}], s15 offen lds")
        else:
            kf = ch - 16
            for n in range(2):
                a(f"s_add_u32 m0, s14, {base + 1024*n}")
                a(f"s_add_u32 s15, s11, {128*kf}")
                a(f"buffer_load_dwordx4 {vr(vDAf[n])}, s[{SWS}:{SWS+3}], s15 offen lds")
            for n in range(2):
                a(f"s_add_u32 m0, s14, {base + 8192 + 1024*n}")
                a(f"s_add_u32 s15, s13, {65536*kf}")
                a(f"buffer_load_dwordx4 {vr(vDW[n])}, s[{SW2}:{SW2+3}], s15 offen lds")
    for ch in range(NS - 1):
        dma(ch)
    for it in range(NCH):
        outstanding_after = min(NCH - 1 - it, NS - 2)
        a(f"s_waitcnt vmcnt({4*outstanding_after})")
        a("s_barrier")
        if it + NS - 1 < NCH:
            dma(it + NS - 1)
        slot = it % NS
        h = slot >> 2; off = (slot & 3) * 16384
        acc = ACCY if it < 16 else ACCF
        if it < 16:
            for f in range(4):
                a(f"ds_read_b128 {vr(FRA(f),4)}, {vr(vRA[h][f])} offset:{off}")
                a(f"ds_read_b128 {vr(FRB(f),4)}, {vr(vRB[h][f])} offset:{off}")
            for f in range(4):
                a(f"s_waitcnt lgkmcnt({6-2*f})")
                a(f"v_mfma_f32_32x32x16_bf16 {vr(acc,16)}, {vr(FRA(f),4)}, {vr(FRB(f),4)}, {vr(acc,16)}")
        else:
            for f in range(4):
                a(f"ds_read_b128 {vr(FRA(f),4)}, {vr(vRA[h][f])} offset:{off}")
                a(f"ds_read_b64_tr_b16 {vr(FRB(f),2)}, {vr(vRW[h])} offset:{off + 2048*f}")
                a(f"ds_read_b64_tr_b16 {vr(FRB(f)+2,2)}, {vr(vRW[h])} offset:{off + 2048*f + 512}")
            for f in range(4):
                a(f"s_waitcnt lgkmcnt({9-3*f})")
                a(f"v_mfma_f32_32x32x16_bf16 {vr(acc,16)}, {vr(FRA(f),4)}, {vr(FRB(f),4)}, {vr(acc,16)}")
    a(f"s_lshr_b32 s6, s{sW}, 1")
    a(f"s_lshl_b32 s6, s6, 5")
    a(f"s_lshl_b32 s7, s4, 6")
    a(f"s_add_u32 s6, s6, s7")
    a(f"s_and_b32 s7, s{sW}, 1")
    a(f"s_lshl_b32 s7, s7, 5")
    a(f"s_lshl_b32 s8, s5, 6")
    a(f"s_add_u32 s7, s7, s8")
    a(f"v_and_b32 {vr(vT0)}, 31, {vr(vL)}")
    a(f"v_add_u32 {vr(vT0)}, s7, {vr(vT0)}")
    a(f"v_lshrrev_b32 {vr(vT1)}, 5, {vr(vL)}")
    a(f"v_lshl_add_u32 {vr(vT1)}, {vr(vT1)}, 2, s6")
    a(f"v_lshlrev_b32 {vr(vT2)}, 3, {vr(vT1)}")
    a(f"v_lshlrev_b32 {vr(vT3)}, 9, {vr(vT1)}")
    a(f"v_add_u32 {vr(vT3)}, {vr(vT3)}, {vr(vT0)}")
    vXo, vOo, vDk = 6, 7, 8
    a(f"v_lshlrev_b32 {vr(vXo)}, 1, {vr(vT3)}")
    a(f"v_lshlrev_b32 {vr(vOo)}, 2, {vr(vT3)}")
    a(f"v_lshlrev_b32 {vr(vT0)}, 1, {vr(vT0)}")
    a(f"global_load_ushort {vr(vDk)}, {vr(vT0)}, s[32:33]")
    XV = 16; ST = 32
    a(f"s_mov_b32 s8, {WS_ST}")
    for g4 in range(4):
        a(f"buffer_load_dwordx4 {vr(ST+8*g4,4)}, {vr(vT2)}, s[{SWS}:{SWS+3}], s8 offen offset:{64*g4}")
        a(f"buffer_load_dwordx4 {vr(ST+8*g4+4,4)}, {vr(vT2)}, s[{SWS}:{SWS+3}], s8 offen offset:{64*g4+16}")
    for i in range(16):
        ro = 8 * (i >> 2) + (i & 3)
        a(f"s_mov_b32 s9, {ro*1024}")
        a(f"buffer_load_ushort {vr(XV+i)}, {vr(vXo)}, s[{SX}:{SX+3}], s9 offen")
    F = list(range(ACCF, ACCF+16)); Tm = list(range(64, 80))
    silu_bf16(a, F, Tm)
    for v in F: a(f"v_cvt_pk_bf16_f32 {vr(v)}, 0, {vr(v)}")
    a("s_waitcnt vmcnt(0)")
    a(f"v_lshlrev_b32 {vr(vDk)}, 16, {vr(vDk)}")
    for i in range(16):
        x = XV + i; t = 64 + i; nm = ST + 2*i; rs = ST + 2*i + 1
        a(f"v_lshlrev_b32 {vr(x)}, 16, {vr(x)}")
        a(f"v_add_f32 {vr(t)}, {vr(x)}, {vr(nm)}")
        a(f"v_cvt_pk_bf16_f32 {vr(t)}, 0, {vr(t)}")
        a(f"v_mul_f32 {vr(t)}, {vr(t)}, {vr(rs)}")
        a(f"v_cvt_pk_bf16_f32 {vr(t)}, 0, {vr(t)}")
        a(f"v_mul_f32 {vr(t)}, {vr(t)}, {vr(vDk)}")
        a(f"v_cvt_pk_bf16_f32 {vr(t)}, 0, {vr(t)}")
        a(f"v_fma_f32 {vr(t)}, 2.0, {vr(ACCY+i)}, {vr(t)}")
        a(f"v_mul_f32 {vr(t)}, {vr(t)}, {vr(ACCF+i)}")
        a(f"v_add_f32 {vr(t)}, {vr(t)}, {vr(x)}")
        ro = 8 * (i >> 2) + (i & 3)
        a(f"s_mov_b32 s9, {ro*2048}")
        a(f"buffer_store_dword {vr(t)}, {vr(vOo)}, s[{SO}:{SO+3}], s9 offen")
    a("K2_END:")
    a("s_endpgm")
    return a

def kd(name, vgpr, accum, sgpr=96):
    return f""".section .rodata,"a"
.p2align 6
.amdhsa_kernel {name}
  .amdhsa_next_free_vgpr {vgpr}
  .amdhsa_next_free_sgpr {sgpr}
  .amdhsa_accum_offset {accum}
  .amdhsa_group_segment_fixed_size 0
  .amdhsa_kernarg_size 120
  .amdhsa_user_sgpr_count 2
  .amdhsa_user_sgpr_kernarg_segment_ptr 1
  .amdhsa_system_sgpr_workgroup_id_x 1
.end_amdhsa_kernel
"""

def main(out):
    ref = open("cdna_kernels/" + NAME + ".s.ref").read().split("\n")
    hdr = [l for l in ref if l.startswith(";") and "@launch" not in l and "Override" not in l and "grid=ceil" not in l]
    k1 = gen_k1(); k2 = gen_k2()
    s = "\n".join(hdr) + "\n"
    s += "; @launch kernel=k1_kernel grid=(256,1,1) block=(256,1,1) lds=135168\n"
    s += "; @launch kernel=k2_kernel grid=(256,1,1) block=(256,1,1) lds=131072\n"
    s += '.amdgcn_target "amdgcn-amd-amdhsa--gfx950"\n.text\n'
    for nm, k in (("k1_kernel", k1), ("k2_kernel", k2)):
        s += f".globl {nm}\n.p2align 8\n.type {nm},@function\n{nm}:\n" + k.text()
    s += kd("k1_kernel", 320, 256) + kd("k2_kernel", 128, 128)
    open(out, "w").write(s)
    print("k1 instrs", k1.count, "k2 instrs", k2.count, "bytes", len(s))

if __name__ == "__main__":
    main(sys.argv[1] if len(sys.argv) > 1 else "cdna_kernels/" + NAME + ".s")
```

```python
import sys, struct
from asmlib import Asm

NAME = "recurrent_scan__ssm_conv_s5__dense_activation_silu__prompt"
WS_H1 = 0
WS_HH = 0x800000
WS_E = 0xC00000
WS_F1 = 0xC10000
WS_F2 = 0xC10800
WS_SIZE = 0xE00000
LOG2E = 0x3fb8aa3b
INV2PI = "0.15915494309189535"
SLOT = 16384
NSLOT = 8
SCR = NSLOT * SLOT
LDS_BRE = 98304
LDS_BIM = 131072
LDS_W1A = 131072

def vr(b, n=1):
    return f"v{b}" if n == 1 else f"v[{b}:{b+n-1}]"
def sr(b, n=1):
    return f"s{b}" if n == 1 else f"s[{b}:{b+n-1}]"
def flit(x):
    return hex(struct.unpack('<I', struct.pack('<f', float(x)))[0])

STAMPS = False
VST = 30
_nst = [0]
def stamp(a, tag=None):
    if not STAMPS: return
    a.flush()
    a("s_memtime s[98:99]")
    a("s_waitcnt lgkmcnt(0)")
    a(f"v_writelane_b32 {vr(VST)}, s98, {_nst[0]}")
    _nst[0] += 1

def set_exec(a, m):
    a(f"s_mov_b32 exec_lo, {hex(m & 0xffffffff)}")
    a(f"s_mov_b32 exec_hi, {hex((m >> 32) & 0xffffffff)}")

def srd(a, s, lo, hi, size):
    a(f"s_mov_b32 s{s}, s{lo}")
    a(f"s_mov_b32 s{s+1}, s{hi}")
    a(f"s_mov_b32 s{s+2}, {size}")
    a(f"s_mov_b32 s{s+3}, 0x20000")

def cexp(a, dr, di, zr2, zi2, n, t0, t1):
    if isinstance(n, str):
        a(f"v_mul_f32 {vr(t0)}, {n}, {vr(zr2)}")
        a(f"v_mul_f32 {vr(t1)}, {n}, {vr(zi2)}")
    elif n == 1:
        a(f"v_mov_b32 {vr(t0)}, {vr(zr2)}")
        a(f"v_mov_b32 {vr(t1)}, {vr(zi2)}")
    else:
        a(f"v_mul_f32 {vr(t0)}, {flit(n)}, {vr(zr2)}")
        a(f"v_mul_f32 {vr(t1)}, {flit(n)}, {vr(zi2)}")
    a(f"v_exp_f32 {vr(t0)}, {vr(t0)}")
    a(f"v_fract_f32 {vr(t1)}, {vr(t1)}")
    a(f"v_cos_f32 {vr(dr)}, {vr(t1)}")
    a(f"v_sin_f32 {vr(di)}, {vr(t1)}")
    a(f"v_mul_f32 {vr(dr)}, {vr(dr)}, {vr(t0)}")
    a(f"v_mul_f32 {vr(di)}, {vr(di)}, {vr(t0)}")

def red4(a, v, t):
    a(f"v_mov_b32 {vr(t)}, {vr(v)}")
    a(f"v_permlane16_swap_b32 {vr(v)}, {vr(t)}")
    a(f"v_add_f32 {vr(v)}, {vr(v)}, {vr(t)}")
    a(f"v_mov_b32 {vr(t)}, {vr(v)}")
    a(f"v_permlane32_swap_b32 {vr(v)}, {vr(t)}")
    a(f"v_add_f32 {vr(v)}, {vr(v)}, {vr(t)}")

def cfma(a, sr_, si_, lr, li, pr, pi):
    a(f"v_fmac_f32 {vr(sr_)}, {vr(lr)}, {vr(pr)}")
    a(f"v_fmac_f32 {vr(si_)}, {vr(lr)}, {vr(pi)}")
    a(f"v_fma_f32 {vr(sr_)}, -{vr(li)}, {vr(pi)}, {vr(sr_)}")
    a(f"v_fmac_f32 {vr(si_)}, {vr(li)}, {vr(pr)}")

def silu_ops(vals, tmp):
    o = []
    for v in vals: o.append(f"v_cvt_pk_bf16_f32 {vr(v)}, 0, {vr(v)}")
    for v, t in zip(vals, tmp): o.append(f"v_mul_f32 {vr(t)}, 0xbfb8aa3b, {vr(v)}")
    for v, t in zip(vals, tmp): o.append(f"v_exp_f32 {vr(t)}, {vr(t)}")
    for v, t in zip(vals, tmp): o.append(f"v_add_f32 {vr(t)}, 1.0, {vr(t)}")
    for v, t in zip(vals, tmp): o.append(f"v_rcp_f32 {vr(t)}, {vr(t)}")
    for v, t in zip(vals, tmp): o.append(f"v_mul_f32 {vr(v)}, {vr(v)}, {vr(t)}")
    return o

def merge(a, main, fill):
    nm = sum(1 for m in main if m.startswith("v_mfma"))
    fi = 0; seen = 0
    for m in main:
        a(m)
        if m.startswith("v_mfma"):
            seen += 1
            tgt = (len(fill) * seen) // nm
            while fi < tgt:
                a(fill[fi]); fi += 1
    while fi < len(fill):
        a(fill[fi]); fi += 1

def gen():
    a = Asm()
    XA = lambda fa, kb: 128 + (fa * 16 + kb) * 4
    FB = lambda n: 64 + 4 * (n & 7)
    ACC = [96, 100]
    EV = list(range(104, 112)); ET = list(range(112, 120))
    PK = [120, 124]
    SA = lambda ri, fa: 32 + ri * 8 + fa * 4
    vL, vI, vQ = 1, 2, 3
    T0, T1, T2, T3, T4, T5 = 4, 5, 6, 7, 8, 9
    vXB = [10, 11, 12, 13]
    vTC = [14, 15, 16]
    vTN = 17
    vFP = 18
    vFF = 19
    vD0 = 20
    vD = 21
    vW1 = 22
    vXD = 23
    vNM = [24, 25]; vRS = [26, 27]
    vNMc = 28
    vH1 = 29
    vZR, vZI, vLr, vLi, vCr, vCi = 48, 49, 50, 51, 52, 53
    vPr, vPi = 54, 55
    vONE = 56
    vPm = [60, 61, 62]
    CT = list(range(64, 80))
    sW, sC, sG = 3, 4, 5
    SX, SW1, SBD, SWS, SP1, SP2, SO = 48, 52, 56, 60, 64, 68, 72
    sRG, sH, sHH, sCT = 76, 77, 78, 79
    sIDX, sCNT, sDS, sDM, sDstepS, sDstepM, sDX, sDstepX = 80, 81, 82, 83, 84, 85, 86, 87
    sLO, sHI = 88, 89
    sRET = 96
    a("s_cmp_ge_u32 s2, 256")
    a("s_cbranch_scc1 K_END")
    a("s_load_dwordx16 s[16:31], s[0:1], 0")
    a("s_load_dwordx2 s[32:33], s[0:1], 64")
    a("s_load_dwordx8 s[36:43], s[0:1], 80")
    a("s_load_dwordx2 s[34:35], s[0:1], 112")
    a("s_getpc_b64 s[44:45]")
    a(f"v_lshlrev_b32 {vr(T0)}, 7, v0")
    a(f"v_min_u32 {vr(T0)}, CODE_END-main_kernel-64, {vr(T0)}")
    a(f"global_load_dword {vr(63)}, {vr(T0)}, s[44:45]")
    if STAMPS: a(f"v_mov_b32 {vr(VST)}, 0")
    stamp(a)
    a(f"v_lshrrev_b32 {vr(T0)}, 6, v0")
    a(f"v_readfirstlane_b32 s{sW}, {vr(T0)}")
    a(f"v_and_b32 {vr(vL)}, 63, v0")
    a(f"v_and_b32 {vr(vI)}, 15, v0")
    a(f"v_lshrrev_b32 {vr(vQ)}, 4, {vr(vL)}")
    a("s_and_b32 s6, s2, 6")
    a("s_lshl_b32 s6, s6, 1")
    a("s_lshr_b32 s7, s2, 3")
    a("s_and_b32 s7, s7, 3")
    a(f"s_add_u32 s{sC}, s6, s7")
    a(f"s_and_b32 s{sHH}, s2, 1")
    a(f"s_lshr_b32 s{sCT}, s2, 5")
    a(f"s_lshl_b32 s6, s{sHH}, 3")
    a(f"s_add_u32 s{sG}, s6, s{sCT}")
    a(f"s_and_b32 s{sRG}, s{sW}, 3")
    a(f"s_lshr_b32 s{sH}, s{sW}, 2")
    a(f"s_and_b32 s6, s{sW}, 1")
    a("s_lshl_b32 s6, s6, 3")
    a(f"v_xor_b32 {vr(vXD)}, s6, {vr(vL)}")
    a(f"v_lshlrev_b32 {vr(vXD)}, 4, {vr(vXD)}")
    a(f"s_lshl_b32 s8, s{sC}, 7")
    a(f"s_lshl_b32 s7, s{sW}, 4")
    a("s_add_u32 s8, s8, s7")
    a("s_lshl_b32 s8, s8, 10")
    a(f"s_lshl_b32 s9, s{sW}, 13")
    a("s_waitcnt lgkmcnt(0)")
    srd(a, SX, 16, 17, 2097152)
    srd(a, SW1, 36, 37, 1835008)
    srd(a, SWS, 34, 35, WS_SIZE)
    for fa in range(2):
        for n in range(8):
            a(f"v_xor_b32 {vr(vD)}, {n<<4}, {vr(vXD)}")
            a(f"s_add_u32 m0, s9, {fa*65536 + n*1024}")
            a(f"s_add_u32 s10, s8, {(8*(n>>2) + (n&3) + 4*fa)*1024}")
            a(f"buffer_load_dwordx4 {vr(vD)}, s[{SX}:{SX+3}], s10 offen lds")
    a(f"s_lshr_b32 s6, s{sW}, 1")
    a("s_and_b32 s6, s6, 1")
    a("s_lshl_b32 s6, s6, 2")
    a(f"v_or_b32 {vr(T0)}, s6, {vr(vQ)}")
    a(f"v_lshrrev_b32 {vr(T1)}, 1, {vr(vI)}")
    a(f"v_xor_b32 {vr(T0)}, {vr(T0)}, {vr(T1)}")
    a(f"v_min_u32 {vr(T0)}, 6, {vr(T0)}")
    a(f"v_lshlrev_b32 {vr(T0)}, 5, {vr(T0)}")
    a(f"v_and_b32 {vr(T1)}, 1, {vr(vI)}")
    a(f"v_lshl_add_u32 {vr(T0)}, {vr(T1)}, 4, {vr(T0)}")
    a("s_movk_i32 s6, 3584")
    a(f"v_mul_lo_u32 {vr(T1)}, {vr(vQ)}, s6")
    a(f"v_add_u32 {vr(T0)}, {vr(T0)}, {vr(T1)}")
    a(f"s_mul_i32 s6, s{sG}, 224")
    a(f"v_add_u32 {vr(vW1)}, s6, {vr(T0)}")
    a(f"s_mul_i32 s11, s{sW}, 14336")
    a(f"s_lshl_b32 s12, s{sW}, 10")
    for n in range(4):
        a(f"s_add_u32 m0, s12, {LDS_W1A + 8192*n}")
        a(f"s_add_u32 s10, s11, {8*14336*n}")
        a(f"buffer_load_dwordx4 {vr(vW1)}, s[{SW1}:{SW1+3}], s10 offen lds")
    a(f"s_lshl_b32 s6, s{sG}, 6")
    a(f"s_lshl_b32 s7, s{sH}, 5")
    a("s_add_u32 s6, s6, s7")
    a(f"v_lshl_add_u32 {vr(T1)}, {vr(vI)}, 1, s6")
    a(f"global_load_ushort {vr(vPm[0])}, {vr(T1)}, s[18:19]")
    a(f"global_load_ushort {vr(vPm[1])}, {vr(T1)}, s[20:21]")
    a(f"global_load_ushort {vr(vPm[2])}, {vr(T1)}, s[30:31]")
    a(f"s_lshl_b32 s6, s{sRG}, 4")
    a(f"v_add_u32 {vr(T0)}, s6, {vr(vI)}")
    a(f"v_lshlrev_b32 {vr(T0)}, 10, {vr(T0)}")
    for j in range(4):
        a(f"v_or_b32 {vr(T1)}, {4*j}, {vr(vQ)}")
        a(f"v_xor_b32 {vr(T1)}, {vr(T1)}, {vr(vI)}")
        a(f"v_lshl_add_u32 {vr(vXB[j])}, {vr(T1)}, 4, {vr(T0)}")
    for k in range(4): a(f"v_mov_b32 {vr(vONE+k)}, 0x3f803f80")
    a(f"s_mov_b32 s{sLO}, 0x3f80")
    a(f"s_mov_b32 s{sHI}, 0x3f800000")
    a(f"v_bfe_u32 {vr(T0)}, {vr(vL)}, 2, 2")
    a(f"v_lshl_add_u32 {vr(T1)}, {vr(vQ)}, 3, {vr(T0)}")
    a(f"v_lshlrev_b32 {vr(T1)}, 8, {vr(T1)}")
    a(f"v_and_b32 {vr(T2)}, 3, {vr(vL)}")
    a(f"v_lshl_add_u32 {vr(vFP)}, {vr(T2)}, 3, {vr(T1)}")
    a(f"v_and_b32 {vr(T2)}, 1, {vr(vQ)}")
    a(f"v_lshl_add_u32 {vr(T0)}, {vr(T2)}, 2, {vr(T0)}")
    a(f"v_lshlrev_b32 {vr(vFF)}, 5, {vr(T0)}")
    a(f"v_lshrrev_b32 {vr(T0)}, 2, {vr(vI)}")
    a(f"v_lshlrev_b32 {vr(T0)}, 3, {vr(T0)}")
    a(f"v_and_b32 {vr(T1)}, 3, {vr(vI)}")
    a(f"v_add_u32 {vr(T0)}, {vr(T0)}, {vr(T1)}")
    a(f"s_lshl_b32 s6, s{sRG}, 5")
    a(f"v_add_u32 {vr(T0)}, s6, {vr(T0)}")
    a("s_movk_i32 s6, 3584")
    a(f"v_mul_lo_u32 {vr(T0)}, {vr(T0)}, s6")
    a(f"v_and_b32 {vr(T1)}, 1, {vr(vQ)}")
    a(f"v_lshl_add_u32 {vr(T0)}, {vr(T1)}, 5, {vr(T0)}")
    a(f"v_lshrrev_b32 {vr(T1)}, 1, {vr(vQ)}")
    a(f"v_lshl_add_u32 {vr(vH1)}, {vr(T1)}, 4, {vr(T0)}")
    a(f"v_and_b32 {vr(T1)}, 3, {vr(vI)}")
    a(f"v_cmp_eq_u32 s[90:91], 1, {vr(T1)}")
    a(f"v_cmp_eq_u32 s[92:93], 2, {vr(T1)}")
    a(f"v_cmp_eq_u32 s[94:95], 3, {vr(T1)}")
    a(f"v_lshrrev_b32 {vr(T1)}, 2, {vr(vI)}")
    a(f"v_cmp_eq_u32 s[46:47], {vr(T1)}, {vr(vQ)}")
    stamp(a)

    def process_fa(fa):
        AS, AQ = 96, 100
        for kb in range(16):
            c = "0" if kb == 0 else vr(AS, 4)
            a(f"v_mfma_f32_16x16x32_bf16 {vr(AS,4)}, {vr(vONE,4)}, {vr(XA(fa,kb),4)}, {c}")
        for kb in range(16):
            c = "0" if kb == 0 else vr(AQ, 4)
            a(f"v_mfma_f32_16x16x32_bf16 {vr(AQ,4)}, {vr(XA(fa,kb),4)}, {vr(XA(fa,kb),4)}, {c}")
            if kb == 3:
                a(f"v_mul_f32 {vr(T4)}, 0xbb000000, {vr(AS)}")
                a(f"v_cvt_pk_bf16_f32 {vr(vNM[fa])}, 0, {vr(T4)}")
                a(f"v_mov_b32 {vr(vNMc)}, {vr(vNM[fa])}")
        a(f"v_cndmask_b32 {vr(T0)}, {vr(AQ)}, {vr(AQ+1)}, s[90:91]")
        a(f"v_cndmask_b32 {vr(T0)}, {vr(T0)}, {vr(AQ+2)}, s[92:93]")
        a(f"v_cndmask_b32 {vr(T0)}, {vr(T0)}, {vr(AQ+3)}, s[94:95]")
        a(f"v_cndmask_b32 {vr(T0)}, 0, {vr(T0)}, s[46:47]")
        red4(a, T0, T1)
        a(f"v_mul_f32 {vr(T0)}, 0x3b000000, {vr(T0)}")
        a(f"v_fma_f32 {vr(T0)}, -{vr(T4)}, {vr(T4)}, {vr(T0)}")
        a(f"v_max_f32 {vr(T0)}, 0, {vr(T0)}")
        a(f"v_cvt_pk_bf16_f32 {vr(T0)}, 0, {vr(T0)}")
        a(f"v_add_f32 {vr(T0)}, 0x3727c5ac, {vr(T0)}")
        a(f"v_cvt_pk_bf16_f32 {vr(T0)}, 0, {vr(T0)}")
        a(f"v_sqrt_f32 {vr(T0)}, {vr(T0)}")
        a(f"v_cvt_pk_bf16_f32 {vr(T0)}, 0, {vr(T0)}")
        a(f"v_rcp_f32 {vr(vRS[fa])}, {vr(T0)}")

    def call(a, label):
        a.flush()
        a(f"s_call_b64 s[{sRET}:{sRET+1}], {label}")
        a.flush()

    def read_x(fa):
        for kb in range(16):
            a(f"ds_read_b128 {vr(XA(fa,kb),4)}, {vr(vXB[kb&3])} offset:{(kb>>2)*256}")

    a("s_waitcnt vmcnt(15)")
    a("s_barrier")
    stamp(a)
    read_x(0)
    for j in range(4): a(f"v_add_u32 {vr(vXB[j])}, 0x10000, {vr(vXB[j])}")
    a("s_waitcnt lgkmcnt(0)")
    a("s_barrier")
    process_fa(0)
    a(f"s_mov_b32 s{sIDX}, 0")
    a(f"s_mov_b32 s{sCNT}, 8")
    for k in range(4): a(f"s_mov_b32 s{SBD+k}, s{SW1+k}")
    a(f"v_mov_b32 {vr(vD0)}, {vr(vW1)}")
    a(f"s_add_u32 s{sDS}, s11, {32*14336}")
    a(f"s_mov_b32 s{sDM}, s12")
    a(f"s_mov_b32 s{sDstepS}, {8*14336}")
    a(f"s_mov_b32 s{sDstepM}, 8192")
    a(f"s_mov_b32 s{sDX}, 0")
    a(f"s_mov_b32 s{sDstepX}, 0")
    call(a, "CENTER")
    stamp(a)
    a("s_waitcnt vmcnt(15)")
    a("s_barrier")
    read_x(1)
    a("s_waitcnt lgkmcnt(0)")
    a("s_barrier")
    stamp(a)
    process_fa(1)
    a(f"s_mov_b32 s{sCNT}, 4")
    call(a, "CENTER")
    srd(a, SBD, 22, 23, 524288)
    a(f"s_lshl_b32 s6, s{sRG}, 2")
    a(f"v_xor_b32 {vr(vD0)}, s6, {vr(vL)}")
    a(f"v_lshlrev_b32 {vr(vD0)}, 4, {vr(vD0)}")
    a(f"s_lshl_b32 s13, s{sG}, 5")
    a(f"s_lshl_b32 s6, s{sW}, 2")
    a("s_add_u32 s13, s13, s6")
    a("s_lshl_b32 s13, s13, 10")
    a(f"s_mov_b32 s{sDS}, s13")
    a(f"s_lshl_b32 s14, s{sW}, 12")
    a(f"s_add_u32 s{sDM}, s14, {LDS_BRE}")
    a(f"s_mov_b32 s{sDstepS}, 1024")
    a(f"s_mov_b32 s{sDstepM}, 1024")
    a(f"s_mov_b32 s{sDstepX}, 16")
    a(f"s_mov_b32 s{sCNT}, 4")
    call(a, "CENTER")
    stamp(a)
    a("s_waitcnt vmcnt(16)")
    a(f"v_lshlrev_b32 {vr(vPm[0])}, 16, {vr(vPm[0])}")
    a(f"v_lshlrev_b32 {vr(vPm[1])}, 16, {vr(vPm[1])}")
    a(f"v_lshlrev_b32 {vr(T0)}, 16, {vr(vPm[2])}")
    a(f"v_mul_f32 {vr(T0)}, {hex(LOG2E)}, {vr(T0)}")
    a(f"v_exp_f32 {vr(T0)}, {vr(T0)}")
    a(f"v_cvt_pk_bf16_f32 {vr(T0)}, 0, {vr(T0)}")
    a(f"v_mul_f32 {vr(vZR)}, {vr(T0)}, {vr(vPm[0])}")
    a(f"v_mul_f32 {vr(vZI)}, {vr(T0)}, {vr(vPm[1])}")
    a(f"v_mul_f32 {vr(vZR)}, {hex(LOG2E)}, {vr(vZR)}")
    a(f"v_mul_f32 {vr(vZI)}, {INV2PI}, {vr(vZI)}")
    cexp(a, vLr, vLi, vZR, vZI, 1, T0, T1)
    a(f"v_add_f32 {vr(T0)}, -1.0, {vr(vLr)}")
    a(f"v_mul_f32 {vr(T1)}, {vr(vPm[0])}, {vr(vPm[0])}")
    a(f"v_fmac_f32 {vr(T1)}, {vr(vPm[1])}, {vr(vPm[1])}")
    a(f"v_rcp_f32 {vr(T1)}, {vr(T1)}")
    a(f"v_mul_f32 {vr(vCr)}, {vr(T0)}, {vr(vPm[0])}")
    a(f"v_fmac_f32 {vr(vCr)}, {vr(vLi)}, {vr(vPm[1])}")
    a(f"v_mul_f32 {vr(vCi)}, {vr(vLi)}, {vr(vPm[0])}")
    a(f"v_fma_f32 {vr(vCi)}, -{vr(T0)}, {vr(vPm[1])}, {vr(vCi)}")
    a(f"v_mul_f32 {vr(vCr)}, {vr(vCr)}, {vr(T1)}")
    a(f"v_mul_f32 {vr(vCi)}, {vr(vCi)}, {vr(T1)}")
    sT, sTE, sST, sPAR = 80, 81, 82, 83
    a(f"s_lshl_b32 s{sT}, s{sH}, 7")
    a(f"s_mul_i32 s6, s{sH}, 96")
    a(f"s_add_u32 s{sTE}, s6, 128")
    a(f"s_mul_i32 s{sST}, s{sC}, {128*3584}")
    a(f"s_mul_i32 s6, s{sG}, 224")
    a(f"s_add_u32 s{sST}, s{sST}, s6")
    a(f"s_add_u32 s{sST}, s{sST}, s{sT}")
    a(f"s_mov_b32 s{sPAR}, 0")
    def tile_bases(dst_list, sreg):
        a(f"v_xor_b32 {vr(dst_list[1])}, s{sreg}, {vr(vFF)}")
        a(f"v_add_u32 {vr(dst_list[1])}, {vr(dst_list[1])}, {vr(vFP)}")
        a(f"v_add_u32 {vr(dst_list[0])}, 0x20000, {vr(dst_list[1])}")
        a(f"v_add_u32 {vr(dst_list[2])}, 0x10000, {vr(dst_list[1])}")
    def trd(kb, nxt=False):
        if nxt:
            base, off = vTN, 8192 * kb
        elif kb < 4: base, off = vTC[0], 8192 * kb
        elif kb < 12: base, off = vTC[1], 8192 * (kb - 4)
        else: base, off = vTC[2], 8192 * (kb - 12)
        d = FB(kb)
        return [f"ds_read_b64_tr_b16 {vr(d,2)}, {vr(base)} offset:{off}",
                f"ds_read_b64_tr_b16 {vr(d+2,2)}, {vr(base)} offset:{off+1024}"]
    tile_bases(vTC, sT)
    a("s_waitcnt vmcnt(0)")
    a("s_barrier")
    stamp(a)
    for kb in range(4):
        for s in trd(kb): a(s)
    def epi_ops():
        o = silu_ops(EV, ET)
        for fa in range(2):
            o.append(f"v_cvt_pk_bf16_f32 {vr(PK[fa]+2)}, {vr(EV[4*fa])}, {vr(EV[4*fa+1])}")
            o.append(f"v_cvt_pk_bf16_f32 {vr(PK[fa]+3)}, {vr(EV[4*fa+2])}, {vr(EV[4*fa+3])}")
        return o
    def epi_head():
        for k in range(8):
            a(f"v_mul_f32 {vr(EV[k])}, {vr(ACC[k>>2] + (k&3))}, {vr(vRS[k>>2])}")
    def pair_store():
        for fa in range(2):
            a(f"v_permlane16_swap_b32 {vr(PK[fa])}, {vr(PK[fa]+2)}")
            a(f"v_permlane16_swap_b32 {vr(PK[fa]+1)}, {vr(PK[fa]+3)}")
        a(f"s_add_u32 s6, s{sST}, {4*3584}")
        a(f"buffer_store_dwordx4 {vr(PK[0],4)}, {vr(vH1)}, s[{SWS}:{SWS+3}], s{sST} offen sc1")
        a(f"buffer_store_dwordx4 {vr(PK[1],4)}, {vr(vH1)}, s[{SWS}:{SWS+3}], s6 offen sc1")
        a(f"s_add_u32 s{sST}, s{sST}, 64")
    a("FFN_LOOP:")
    epi_head()
    a(f"s_add_u32 s{sT}, s{sT}, 32")
    a(f"v_xor_b32 {vr(vTN)}, s{sT}, {vr(vFF)}")
    a(f"v_add_u32 {vr(vTN)}, {vr(vTN)}, {vr(vFP)}")
    a(f"v_add_u32 {vr(vTN)}, 0x20000, {vr(vTN)}")
    main = []
    for kb in range(16):
        main += trd(kb + 4) if kb + 4 < 16 else trd(kb + 4 - 16, True)
        main.append("s_waitcnt lgkmcnt(8)")
        for fa in range(2):
            c = "0" if kb == 0 else vr(ACC[fa], 4)
            main.append(f"v_mfma_f32_16x16x32_bf16 {vr(ACC[fa],4)}, {vr(FB(kb),4)}, {vr(XA(fa,kb),4)}, {c}")
    merge(a, main, epi_ops())
    a(f"v_add_u32 {vr(vTC[1])}, 0xfffe0000, {vr(vTN)}")
    a(f"v_mov_b32 {vr(vTC[0])}, {vr(vTN)}")
    a(f"v_add_u32 {vr(vTC[2])}, 0xffff0000, {vr(vTN)}")
    a(f"s_add_u32 s{sPAR}, s{sPAR}, 1")
    a.flush()
    a(f"s_cmp_eq_u32 s{sPAR}, 3")
    a("s_cbranch_scc1 FFN_ODD")
    for fa in range(2):
        a(f"v_mov_b32 {vr(PK[fa])}, {vr(PK[fa]+2)}")
        a(f"v_mov_b32 {vr(PK[fa]+1)}, {vr(PK[fa]+3)}")
    a("s_branch FFN_NEXT")
    a("FFN_ODD:")
    pair_store()
    a("FFN_NEXT:")
    a(f"s_cmp_lt_u32 s{sT}, s{sTE}")
    a("s_cbranch_scc1 FFN_LOOP")
    a("s_waitcnt lgkmcnt(0)")
    a("s_barrier")
    stamp(a)
    srd(a, SBD, 24, 25, 524288)
    for n in range(4):
        a(f"v_xor_b32 {vr(vD)}, {n<<4}, {vr(vD0)}")
        a(f"s_add_u32 m0, s14, {LDS_BIM + 1024*n}")
        a(f"s_add_u32 s10, s13, {1024*n}")
        a(f"buffer_load_dwordx4 {vr(vD)}, s[{SBD}:{SBD+3}], s10 offen lds")
    vP1F, vP1Y, vP2F, vP2Y, vP1, vP2 = 192, 193, 194, 195, 196, 197
    sP1s, sP2s, sP1st, sP2st, sM1, sM2, sIT, sSTOP, sSL, sTY = 80, 81, 82, 83, 84, 85, 86, 87, 90, 91
    vP1F, vP1Y, vP2F, vP2Y, vP1, vP2 = 14, 15, 16, 17, 18, 19
    a(f"s_lshl_b32 s6, s{sW}, 3")
    a(f"v_and_b32 {vr(T0)}, 7, {vr(vL)}")
    a(f"v_lshrrev_b32 {vr(T1)}, 3, {vr(vL)}")
    a(f"v_add_u32 {vr(T2)}, s6, {vr(T1)}")
    a(f"v_lshlrev_b32 {vr(T3)}, 1, {vr(vQ)}")
    a(f"v_xor_b32 {vr(T3)}, {vr(T3)}, {vr(T0)}")
    a(f"s_and_b32 s7, s{sW}, 1")
    a(f"v_xor_b32 {vr(T3)}, s7, {vr(T3)}")
    a(f"v_lshlrev_b32 {vr(T3)}, 4, {vr(T3)}")
    a(f"v_lshl_add_u32 {vr(vP1Y)}, {vr(T2)}, 10, {vr(T3)}")
    a("s_movk_i32 s7, 3584")
    a(f"v_mul_lo_u32 {vr(vP1F)}, {vr(T2)}, s7")
    a(f"v_add_u32 {vr(vP1F)}, {vr(vP1F)}, {vr(T3)}")
    a(f"v_add_u32 {vr(T2)}, s6, {vr(T1)}")
    a(f"v_bfe_u32 {vr(T3)}, {vr(vL)}, 4, 1")
    a(f"v_lshlrev_b32 {vr(T3)}, 2, {vr(T3)}")
    a(f"v_xor_b32 {vr(T3)}, {vr(T3)}, {vr(T0)}")
    a(f"v_lshlrev_b32 {vr(T3)}, 4, {vr(T3)}")
    a(f"v_lshl_add_u32 {vr(vP2F)}, {vr(T2)}, 10, {vr(T3)}")
    a(f"v_lshl_add_u32 {vr(vP2Y)}, {vr(T2)}, 12, {vr(T3)}")
    a(f"v_mov_b32 {vr(vP2)}, {vr(vP2F)}")
    a(f"v_mov_b32 {vr(vP1)}, {vr(vP1F)}")
    srd(a, SP2, 38, 39, 1835008)
    for k in range(4): a(f"s_mov_b32 s{SP1+k}, s{SWS+k}")
    sSTH = 92
    a(f"s_mov_b32 s{sSTH}, s{sST}")
    a(f"s_lshl_b32 s{sP2s}, s{sCT}, 7")
    a(f"s_mov_b32 s{sP2st}, 65536")
    a(f"s_lshl_b32 s{sM1}, s{sW}, 10")
    a(f"s_add_u32 s{sM2}, s{sM1}, 8192")
    def p2_issue(slot):
        a(f"s_add_u32 m0, s{sM2}, {slot*SLOT}")
        a(f"buffer_load_dwordx4 {vr(vP2)}, s[{SP2}:{SP2+3}], s{sP2s} offen sc1 lds")
        a(f"s_add_u32 s{sP2s}, s{sP2s}, s{sP2st}")
    for s_ in range(6): p2_issue(s_)
    a(f"s_lshl_b32 s6, s{sH}, 14")
    a(f"s_lshl_b32 s7, s{sRG}, 14")
    a("s_sub_u32 s6, s6, s7")
    a(f"s_add_u32 s6, s6, {LDS_BRE - 65536}")
    for j in range(4): a(f"v_add_u32 {vr(vXB[j])}, s6, {vr(vXB[j])}")
    def brd(kb):
        return f"ds_read_b128 {vr(FB(kb),4)}, {vr(vXB[kb&3])} offset:{(kb>>2)*256}"
    def ssm_main(ri):
        m = [brd(kb) for kb in range(4)]
        for kb in range(16):
            if kb + 4 < 16: m.append(brd(kb + 4))
            m.append(f"s_waitcnt lgkmcnt({min(4, 15-kb)})")
            for fa in range(2):
                c = "0" if kb == 0 else vr(SA(ri, fa), 4)
                m.append(f"v_mfma_f32_16x16x32_bf16 {vr(SA(ri,fa),4)}, {vr(XA(fa,kb),4)}, {vr(FB(kb),4)}, {c}")
        return m
    epi_head()
    merge(a, ssm_main(0), epi_ops())
    a.flush()
    a(f"s_cmp_eq_u32 s{sH}, 1")
    a("s_cbranch_scc1 TAIL_SINGLE")
    a(f"s_mov_b32 s{sST}, s{sSTH}")
    pair_store()
    a("s_branch TAIL_DONE")
    a("TAIL_SINGLE:")
    a(f"v_mov_b32 {vr(PK[0])}, {vr(PK[0]+2)}")
    a(f"v_mov_b32 {vr(PK[0]+1)}, {vr(PK[0]+3)}")
    a(f"v_mov_b32 {vr(PK[0]+2)}, {vr(PK[1]+2)}")
    a(f"v_mov_b32 {vr(PK[0]+3)}, {vr(PK[1]+3)}")
    a(f"v_permlane16_swap_b32 {vr(PK[0])}, {vr(PK[0]+2)}")
    a(f"v_permlane16_swap_b32 {vr(PK[0]+1)}, {vr(PK[0]+3)}")
    a(f"v_and_b32 {vr(T0)}, 1, {vr(vQ)}")
    a(f"s_movk_i32 s6, {4*3584 - 32}")
    a(f"v_mul_lo_u32 {vr(T0)}, {vr(T0)}, s6")
    a(f"v_add_u32 {vr(T0)}, {vr(T0)}, {vr(vH1)}")
    a(f"buffer_store_dwordx4 {vr(PK[0],4)}, {vr(T0)}, s[{SWS}:{SWS+3}], s{sSTH} offen sc1")
    a("TAIL_DONE:")
    for j in range(4): a(f"v_add_u32 {vr(vXB[j])}, {LDS_BIM - LDS_BRE}, {vr(vXB[j])}")
    a("s_waitcnt vmcnt(0)")
    a("s_barrier")
    stamp(a)
    def setflag(base):
        a(f"v_mov_b32 {vr(T0)}, 1")
        a(f"s_lshl_b32 s7, s{sC}, 7")
        a(f"s_lshl_b32 s6, s{sG}, 2")
        a("s_add_u32 s7, s7, s6")
        a(f"s_add_u32 s7, s7, {base}")
        a(f"v_mov_b32 {vr(T1)}, 0")
        a("s_mov_b64 exec, 1")
        a(f"buffer_store_dword {vr(T0)}, {vr(T1)}, s[{SWS}:{SWS+3}], s7 offen sc1")
        a("s_mov_b64 exec, -1")
    a(f"s_cmp_lg_u32 s{sW}, 0")
    a("s_cbranch_scc1 NOFLAG1")
    setflag(WS_F1)
    a("NOFLAG1:")
    p2_issue(6)
    merge(a, ssm_main(1), [])
    a("s_barrier")
    stamp(a)
    def poll(tag, base):
        a.flush()
        a(f"s_cmp_lg_u32 s{sW}, 0")
        a(f"s_cbranch_scc1 POLL_OK{tag}")
        a(f"s_lshl_b32 s7, s{sC}, 7")
        a(f"s_add_u32 s7, s7, {base}")
        a(f"v_lshlrev_b32 {vr(T0)}, 2, {vr(vI)}")
        a("s_mov_b32 s15, 0")
        a(f"POLL{tag}:")
        a("s_add_u32 s15, s15, 1")
        a("s_cmp_gt_u32 s15, 0x8000")
        a(f"s_cbranch_scc1 POLL_OK{tag}")
        a(f"buffer_load_dword {vr(T1)}, {vr(T0)}, s[{SWS}:{SWS+3}], s7 offen sc1")
        a("s_waitcnt vmcnt(0)")
        a(f"v_cmp_eq_u32 vcc, 0, {vr(T1)}")
        a("s_cmp_eq_u64 vcc, 0")
        a(f"s_cbranch_scc1 POLL_OK{tag}")
        a("s_sleep 1")
        a(f"s_branch POLL{tag}")
        a(f"POLL_OK{tag}:")
        a("s_barrier")
    RE = lambda t: SA(0, t >> 2) + (t & 3)
    IM = lambda t: SA(1, t >> 2) + (t & 3)
    a(f"v_lshrrev_b32 {vr(T0)}, 2, {vr(vI)}")
    a(f"v_lshlrev_b32 {vr(T0)}, 3, {vr(T0)}")
    a(f"v_and_b32 {vr(T1)}, 3, {vr(vI)}")
    a(f"v_add_u32 {vr(T0)}, {vr(T0)}, {vr(T1)}")
    a(f"s_lshl_b32 s6, s{sRG}, 5")
    a(f"v_add_u32 {vr(T0)}, s6, {vr(T0)}")
    a(f"v_lshlrev_b32 {vr(T0)}, 2, {vr(T0)}")
    a(f"v_add_u32 {vr(T0)}, {SCR}, {vr(T0)}")
    a(f"ds_write_b32 {vr(T0)}, {vr(vRS[0])}")
    a(f"ds_write_b32 {vr(T0)}, {vr(vRS[1])} offset:16")
    a(f"ds_write_b32 {vr(T0)}, {vr(vNM[0])} offset:512")
    a(f"ds_write_b32 {vr(T0)}, {vr(vNM[1])} offset:528")
    a(f"s_lshl_b32 s6, s{sRG}, 7")
    a(f"s_add_u32 s6, s6, {SCR}")
    a(f"v_lshl_add_u32 {vr(T1)}, {vr(vQ)}, 5, s6")
    RT = 64
    a("s_waitcnt lgkmcnt(0)")
    a(f"ds_read_b128 {vr(RT,4)}, {vr(T1)}")
    a(f"ds_read_b128 {vr(RT+4,4)}, {vr(T1)} offset:16")
    L8r, L8i, L32r, L32i, LQr, LQi = 72, 73, 74, 75, 76, 77
    cexp(a, L8r, L8i, vZR, vZI, 8, T2, T3)
    cexp(a, L32r, L32i, vZR, vZI, 32, T2, T3)
    a(f"v_lshlrev_b32 {vr(T4)}, 3, {vr(vQ)}")
    a(f"v_cvt_f32_u32 {vr(T4)}, {vr(T4)}")
    cexp(a, LQr, LQi, vZR, vZI, vr(T4), T2, T3)
    a("s_waitcnt lgkmcnt(0)")
    for t in range(8):
        a(f"v_mul_f32 {vr(RE(t))}, {vr(RE(t))}, {vr(RT+t)}")
        a(f"v_mul_f32 {vr(IM(t))}, {vr(IM(t))}, {vr(RT+t)}")
    for t in range(1, 8):
        cfma(a, RE(t), IM(t), vLr, vLi, RE(t-1), IM(t-1))
    S0 = 78
    a(f"v_mov_b32 {vr(S0)}, {vr(RE(7))}")
    a(f"v_mov_b32 {vr(S0+1)}, {vr(IM(7))}")
    a(f"s_lshl_b32 s6, s{sW}, 9")
    a(f"s_add_u32 s6, s6, {SCR+1024}")
    a(f"v_lshl_add_u32 {vr(T0)}, {vr(vL)}, 3, s6")
    a(f"ds_write_b64 {vr(T0)}, {vr(S0,2)}")
    a(f"v_lshl_add_u32 {vr(T1)}, {vr(vI)}, 3, s6")
    a(f"v_mov_b32 {vr(vPr)}, 0")
    a(f"v_mov_b32 {vr(vPi)}, 0")
    a("s_waitcnt lgkmcnt(0)")
    PB = 80
    for k in range(3):
        a(f"ds_read_b64 {vr(PB+2*k,2)}, {vr(T1)} offset:{128*k}")
    def horner(S, lr, li, pr, pi):
        cfma(a, S, S+1, lr, li, pr, pi)
        a(f"v_mov_b32 {vr(pr)}, {vr(S)}")
        a(f"v_mov_b32 {vr(pi)}, {vr(S+1)}")
    for k in range(3):
        a(f"s_waitcnt lgkmcnt({2-k})")
        set_exec(a, (~((1 << (16*(k+1))) - 1)) & 0xffffffffffffffff)
        horner(PB+2*k, L8r, L8i, vPr, vPi)
    cfma(a, S0, S0+1, L8r, L8i, vPr, vPi)
    a(f"s_lshl_b32 s7, s{sW}, 7")
    a(f"s_add_u32 s7, s7, {SCR+1024+4096}")
    a(f"v_lshl_add_u32 {vr(T0)}, {vr(vI)}, 3, s7")
    a(f"ds_write_b64 {vr(T0)}, {vr(S0,2)}")
    a("s_mov_b64 exec, -1")
    a(f"s_lshl_b32 s7, s{sH}, 9")
    a(f"s_add_u32 s7, s7, {SCR+1024+4096}")
    a(f"v_lshl_add_u32 {vr(T0)}, {vr(vI)}, 3, s7")
    a("s_waitcnt lgkmcnt(0)")
    a("s_barrier")
    for k in range(4):
        a(f"ds_read_b64 {vr(PB+2*k,2)}, {vr(T0)} offset:{128*k}")
    CWr, CWi = 88, 89
    a(f"v_mov_b32 {vr(CWr)}, 0")
    a(f"v_mov_b32 {vr(CWi)}, 0")
    a("s_waitcnt lgkmcnt(0)")
    for k in range(3):
        a.flush()
        a(f"s_cmp_le_u32 s{sRG}, {k}")
        a("s_cbranch_scc1 PFX_DONE")
        horner(PB+2*k, L32r, L32i, CWr, CWi)
    cfma(a, PB+6, PB+7, L32r, L32i, CWr, CWi)
    a(f"s_lshl_b32 s6, s{sC}, 12")
    a(f"s_lshl_b32 s7, s{sG}, 8")
    a("s_add_u32 s6, s6, s7")
    a(f"s_lshl_b32 s7, s{sH}, 7")
    a("s_add_u32 s6, s6, s7")
    a(f"s_add_u32 s6, s6, {WS_E}")
    a(f"v_lshlrev_b32 {vr(T1)}, 3, {vr(vI)}")
    a(f"v_or_b32 {vr(PB+6)}, 1, {vr(PB+6)}")
    set_exec(a, 0xffff)
    a(f"buffer_store_dwordx2 {vr(PB+6,2)}, {vr(T1)}, s[{SWS}:{SWS+3}], s6 offen sc1")
    a("s_mov_b64 exec, -1")
    a("PFX_DONE:")
    cfma(a, vPr, vPi, LQr, LQi, CWr, CWi)
    stamp(a)
    poll("H1", WS_F1)
    stamp(a)
    a(f"s_lshl_b32 s6, s{sC}, 1")
    a(f"s_add_u32 s6, s6, s{sHH}")
    a(f"s_mul_i32 s{sP1s}, s6, {64*3584}")
    a(f"s_mov_b32 s{sP1st}, 128")
    for s_ in range(7):
        a(f"s_add_u32 m0, s{sM1}, {s_*SLOT}")
        a(f"buffer_load_dwordx4 {vr(vP1)}, s[{SP1}:{SP1+3}], s{sP1s} offen sc1 lds")
        a(f"s_add_u32 s{sP1s}, s{sP1s}, s{sP1st}")
    AF, AY = 128, 144
    F1 = lambda k: 160 + 4 * k
    F2 = lambda k: 168 + 4 * k
    vR1F, vR1Y, vR2F, vR2Y, vR1, vR2, vA1, vA2, vA1b = 176, 177, 178, 179, 180, 181, 182, 183, 188
    a(f"s_lshr_b32 s6, s{sW}, 1")
    a("s_and_b32 s6, s6, 1")
    a(f"s_and_b32 s7, s{sW}, 1")
    a(f"v_lshrrev_b32 {vr(T1)}, 5, {vr(vL)}")
    a(f"s_lshl_b32 s8, s{sH}, 2")
    a(f"v_or_b32 {vr(T0)}, s8, {vr(T1)}")
    a(f"v_and_b32 {vr(T2)}, 6, {vr(vL)}")
    a(f"v_xor_b32 {vr(T0)}, {vr(T0)}, {vr(T2)}")
    a(f"v_bfe_u32 {vr(T2)}, {vr(vL)}, 3, 1")
    a(f"v_xor_b32 {vr(T0)}, {vr(T0)}, {vr(T2)}")
    a(f"v_lshlrev_b32 {vr(T0)}, 4, {vr(T0)}")
    a(f"v_and_b32 {vr(T2)}, 31, {vr(vL)}")
    a(f"v_lshl_add_u32 {vr(T0)}, {vr(T2)}, 7, {vr(T0)}")
    a("s_lshl_b32 s8, s6, 12")
    a("s_lshl_b32 s9, s7, 12")
    a(f"v_add_u32 {vr(vR1F)}, s8, {vr(T0)}")
    a(f"v_add_u32 {vr(vR1Y)}, s9, {vr(T0)}")
    a(f"v_bfe_u32 {vr(T0)}, {vr(vL)}, 2, 2")
    a(f"v_lshl_add_u32 {vr(T1)}, {vr(T1)}, 3, {vr(T0)}")
    a(f"v_lshlrev_b32 {vr(T1)}, 7, {vr(T1)}")
    a(f"v_bfe_u32 {vr(T2)}, {vr(vL)}, 4, 1")
    a(f"v_lshlrev_b32 {vr(T2)}, 1, {vr(T2)}")
    a(f"v_bfe_u32 {vr(T3)}, {vr(vL)}, 1, 1")
    a(f"v_add_u32 {vr(T2)}, {vr(T2)}, {vr(T3)}")
    a(f"v_bfe_u32 {vr(T3)}, {vr(vL)}, 3, 1")
    a(f"v_lshlrev_b32 {vr(T3)}, 2, {vr(T3)}")
    a(f"v_xor_b32 {vr(T2)}, {vr(T2)}, {vr(T3)}")
    a(f"v_and_b32 {vr(T3)}, 1, {vr(vL)}")
    a(f"v_lshl_add_u32 {vr(T1)}, {vr(T3)}, 3, {vr(T1)}")
    a(f"s_lshl_b32 s8, s{sH}, 12")
    a(f"s_add_u32 s8, s8, 8192")
    a(f"v_add_u32 {vr(T1)}, s8, {vr(T1)}")
    a("s_lshl_b32 s8, s7, 2")
    a("s_lshl_b32 s9, s6, 2")
    a(f"v_xor_b32 {vr(T3)}, s8, {vr(T2)}")
    a(f"v_lshl_add_u32 {vr(vR2F)}, {vr(T3)}, 4, {vr(T1)}")
    a(f"v_xor_b32 {vr(T3)}, s9, {vr(T2)}")
    a(f"v_lshl_add_u32 {vr(vR2Y)}, {vr(T3)}, 4, {vr(T1)}")
    a(f"v_mov_b32 {vr(vR1)}, {vr(vR1F)}")
    a(f"v_mov_b32 {vr(vR2)}, {vr(vR2F)}")
    for r in range(32): a(f"v_mov_b32 {vr(AF+r)}, 0")
    a(f"s_mov_b32 s{sIT}, 0")
    a(f"s_mov_b32 s{sSL}, 0")
    a(f"s_mov_b32 s{sTY}, 0")
    def run(stop):
        a(f"s_mov_b32 s{sSTOP}, {stop}")
        call(a, "P2LOOP")
    def run1(it, cnt):
        a(f"s_waitcnt vmcnt({cnt})")
        a(f"s_mov_b32 s{sSTOP}, {it+1}")
        call(a, "P2B")
    EV_E, EV_HHF, EV_HHP = 9, 13, 21
    for it in range(6): run1(it, 6 + it)
    run(EV_E)
    stamp(a)
    Gr, Gi = 64, 65
    a(f"v_mov_b32 {vr(Gr)}, 0")
    a(f"v_mov_b32 {vr(Gi)}, 0")
    a(f"v_lshlrev_b32 {vr(T1)}, 12, {vr(vQ)}")
    a(f"v_lshl_add_u32 {vr(T1)}, {vr(vI)}, 3, {vr(T1)}")
    a(f"s_lshl_b32 s7, s{sG}, 8")
    a(f"s_lshl_b32 s6, s{sH}, 7")
    a("s_add_u32 s7, s7, s6")
    a(f"s_add_u32 s7, s7, {WS_E}")
    EB = 66
    a("s_add_u32 s8, s7, 16384")
    a("s_add_u32 s9, s7, 32768")
    a("s_add_u32 s10, s7, 49152")
    def eloads():
        for m in range(4):
            a(f"buffer_load_dwordx2 {vr(EB+2*m,2)}, {vr(T1)}, s[{SWS}:{SWS+3}], s{7+m} offen sc1")
    eloads()
    WB = 74
    a(f"s_sub_u32 s6, s{sC}, 1")
    a(f"v_sub_u32 {vr(T4)}, s6, {vr(vQ)}")
    for m in range(4):
        a(f"v_add_u32 {vr(T5)}, {(-4*m) & 0xffffffff}, {vr(T4)}")
        a(f"v_cmp_le_i32 vcc, 0, {vr(T5)}")
        a(f"v_max_i32 {vr(T5)}, 0, {vr(T5)}")
        a(f"v_lshlrev_b32 {vr(T5)}, 7, {vr(T5)}")
        a(f"v_cvt_f32_u32 {vr(T5)}, {vr(T5)}")
        cexp(a, WB+2*m, WB+2*m+1, vZR, vZI, vr(T5), T2, T3)
        a(f"v_cndmask_b32 {vr(WB+2*m)}, 0, {vr(WB+2*m)}, vcc")
        a(f"v_cndmask_b32 {vr(WB+2*m+1)}, 0, {vr(WB+2*m+1)}, vcc")
    LJr, LJi = 82, 83
    a(f"v_lshlrev_b32 {vr(T5)}, 3, {vr(vQ)}")
    a(f"s_lshl_b32 s6, s{sRG}, 5")
    a(f"v_add_u32 {vr(T5)}, s6, {vr(T5)}")
    a(f"v_cvt_f32_u32 {vr(T5)}, {vr(T5)}")
    cexp(a, LJr, LJi, vZR, vZI, vr(T5), T2, T3)
    a("s_mov_b32 s15, 0")
    a("EPOLL:")
    a("s_waitcnt vmcnt(0)")
    a(f"v_mov_b32 {vr(T2)}, 1")
    for m in range(4):
        a(f"v_add_u32 {vr(T5)}, {(-4*m) & 0xffffffff}, {vr(T4)}")
        a(f"v_lshrrev_b32 {vr(T5)}, 31, {vr(T5)}")
        a(f"v_or_b32 {vr(T5)}, {vr(T5)}, {vr(EB+2*m)}")
        a(f"v_and_b32 {vr(T2)}, {vr(T2)}, {vr(T5)}")
    a(f"v_cmp_eq_u32 vcc, 0, {vr(T2)}")
    a("s_cmp_eq_u64 vcc, 0")
    a("s_cbranch_scc1 EPOLL_OK")
    a("s_add_u32 s15, s15, 1")
    a("s_cmp_gt_u32 s15, 0x8000")
    a("s_cbranch_scc1 EPOLL_OK")
    a("s_sleep 1")
    eloads()
    a("s_branch EPOLL")
    a("EPOLL_OK:")
    for m in range(4):
        a(f"v_add_u32 {vr(T5)}, {(-4*m) & 0xffffffff}, {vr(T4)}")
        a(f"v_cmp_le_i32 vcc, 0, {vr(T5)}")
        a(f"v_cndmask_b32 {vr(EB+2*m)}, 0, {vr(EB+2*m)}, vcc")
        a(f"v_cndmask_b32 {vr(EB+2*m+1)}, 0, {vr(EB+2*m+1)}, vcc")
        cfma(a, Gr, Gi, WB+2*m, WB+2*m+1, EB+2*m, EB+2*m+1)
    red4(a, Gr, T2)
    red4(a, Gi, T3)
    cfma(a, vPr, vPi, LJr, LJi, Gr, Gi)
    CNr, CNi, HR, HI = 84, 85, 86, 88
    OR_, OI_ = 64, 68
    for t in range(8):
        a(f"v_mul_f32 {vr(CNr)}, {vr(vLr)}, {vr(vPr)}")
        a(f"v_mul_f32 {vr(CNi)}, {vr(vLr)}, {vr(vPi)}")
        a(f"v_fma_f32 {vr(CNr)}, -{vr(vLi)}, {vr(vPi)}, {vr(CNr)}")
        a(f"v_fmac_f32 {vr(CNi)}, {vr(vLi)}, {vr(vPr)}")
        a(f"v_mov_b32 {vr(vPr)}, {vr(CNr)}")
        a(f"v_mov_b32 {vr(vPi)}, {vr(CNi)}")
        a(f"v_add_f32 {vr(RE(t))}, {vr(RE(t))}, {vr(CNr)}")
        a(f"v_add_f32 {vr(IM(t))}, {vr(IM(t))}, {vr(CNi)}")
        h0, h1 = HR + (t & 1), HI + (t & 1)
        a(f"v_mul_f32 {vr(h0)}, {vr(vCr)}, {vr(RE(t))}")
        a(f"v_mul_f32 {vr(h1)}, -{vr(vCr)}, {vr(IM(t))}")
        a(f"v_fma_f32 {vr(h0)}, -{vr(vCi)}, {vr(IM(t))}, {vr(h0)}")
        a(f"v_fma_f32 {vr(h1)}, -{vr(vCi)}, {vr(RE(t))}, {vr(h1)}")
        if t & 1:
            a(f"v_cvt_pk_bf16_f32 {vr(OR_ + (t>>1))}, {vr(HR)}, {vr(HR+1)}")
            a(f"v_cvt_pk_bf16_f32 {vr(OI_ + (t>>1))}, {vr(HI)}, {vr(HI+1)}")
    a(f"v_lshlrev_b32 {vr(T0)}, 12, {vr(vI)}")
    a(f"v_lshl_add_u32 {vr(T0)}, {vr(vQ)}, 4, {vr(T0)}")
    a(f"s_lshl_b32 s6, s{sG}, 17")
    a(f"s_lshl_b32 s7, s{sH}, 16")
    a("s_add_u32 s6, s6, s7")
    a(f"s_lshl_b32 s7, s{sC}, 8")
    a("s_add_u32 s6, s6, s7")
    a(f"s_lshl_b32 s7, s{sRG}, 6")
    a("s_add_u32 s6, s6, s7")
    a(f"s_add_u32 s6, s6, {WS_HH}")
    a(f"s_add_u32 s7, s6, {512*4096}")
    a(f"buffer_store_dwordx4 {vr(OR_,4)}, {vr(T0)}, s[{SWS}:{SWS+3}], s6 offen sc1")
    a(f"buffer_store_dwordx4 {vr(OI_,4)}, {vr(T0)}, s[{SWS}:{SWS+3}], s7 offen sc1")
    stamp(a)
    run(EV_HHF)
    a(f"s_waitcnt vmcnt({2*(EV_HHF-EV_E)})")
    a("s_barrier")
    a(f"s_cmp_lg_u32 s{sW}, 0")
    a("s_cbranch_scc1 NOFLAG2")
    setflag(WS_F2)
    a("NOFLAG2:")
    run(EV_HHP)
    stamp(a)
    poll("HH", WS_F2)
    stamp(a)
    srd(a, SP1, 26, 27, 524288)
    for k in range(4): a(f"s_mov_b32 s{SP2+k}, s{SWS+k}")
    a(f"v_mov_b32 {vr(vP1)}, {vr(vP1Y)}")
    a(f"v_mov_b32 {vr(vP2)}, {vr(vP2Y)}")
    a(f"s_lshl_b32 s{sP1s}, s{sCT}, 16")
    a(f"s_lshl_b32 s6, s{sC}, 8")
    a(f"s_lshl_b32 s7, s{sHH}, 7")
    a("s_add_u32 s6, s6, s7")
    a(f"s_add_u32 s{sP2s}, s6, {WS_HH}")
    a(f"s_mov_b32 s{sP2st}, {64*4096}")
    run(28)
    a(f"v_mov_b32 {vr(vR1)}, {vr(vR1Y)}")
    a(f"v_mov_b32 {vr(vR2)}, {vr(vR2Y)}")
    a(f"s_mov_b32 s{sTY}, 1")
    run(29)
    srd(a, SP1, 28, 29, 524288)
    a(f"s_lshl_b32 s{sP1s}, s{sCT}, 16")
    XV = 192; vXo, vOo, vDk, vSo = 184, 185, 186, 187
    srd(a, SO, 40, 41, 4194304)
    a(f"s_lshr_b32 s6, s{sW}, 1")
    a("s_and_b32 s6, s6, 1")
    a("s_lshl_b32 s6, s6, 5")
    a(f"s_lshl_b32 s7, s{sH}, 4")
    a("s_add_u32 s6, s6, s7")
    a(f"s_lshl_b32 s7, s{sHH}, 6")
    a("s_add_u32 s6, s6, s7")
    a(f"v_lshrrev_b32 {vr(T1)}, 5, {vr(vL)}")
    a(f"v_lshl_add_u32 {vr(T1)}, {vr(T1)}, 2, s6")
    a(f"v_lshlrev_b32 {vr(vSo)}, 2, {vr(T1)}")
    a(f"v_add_u32 {vr(vSo)}, {SCR}, {vr(vSo)}")
    a(f"s_lshl_b32 s7, s{sC}, 7")
    a(f"v_add_u32 {vr(T1)}, s7, {vr(T1)}")
    a(f"s_and_b32 s7, s{sW}, 1")
    a("s_lshl_b32 s7, s7, 5")
    a(f"s_lshl_b32 s8, s{sCT}, 6")
    a("s_add_u32 s7, s7, s8")
    a(f"v_and_b32 {vr(T0)}, 31, {vr(vL)}")
    a(f"v_add_u32 {vr(T0)}, s7, {vr(T0)}")
    a(f"v_lshl_add_u32 {vr(T1)}, {vr(T1)}, 9, {vr(T0)}")
    a(f"v_lshlrev_b32 {vr(vXo)}, 1, {vr(T1)}")
    a(f"v_lshlrev_b32 {vr(vOo)}, 2, {vr(T1)}")
    a(f"v_lshlrev_b32 {vr(T0)}, 1, {vr(T0)}")
    a(f"global_load_ushort {vr(vDk)}, {vr(T0)}, s[32:33]")
    for ii in range(8):
        ro = 8 * (ii >> 2) + (ii & 3)
        if ro * 1024 < 4096:
            a(f"buffer_load_ushort {vr(XV+ii)}, {vr(vXo)}, s[{SX}:{SX+3}], 0 offen offset:{ro*1024}")
        else:
            a(f"s_mov_b32 s9, {ro*1024}")
            a(f"buffer_load_ushort {vr(XV+ii)}, {vr(vXo)}, s[{SX}:{SX+3}], s9 offen")
    run(38)
    for it in range(38, 44): run1(it, 2 * (43 - it))
    stamp(a)
    a("s_barrier")
    a(f"s_lshl_b32 s6, s{sW}, 12")
    a(f"v_lshl_add_u32 {vr(T0)}, {vr(vL)}, 4, s6")
    a(f"s_xor_b32 s7, s{sW}, 4")
    a("s_lshl_b32 s7, s7, 12")
    a(f"v_lshl_add_u32 {vr(T1)}, {vr(vL)}, 4, s7")
    a.flush()
    a(f"s_cmp_eq_u32 s{sH}, 1")
    a("s_cbranch_scc1 RED_H1")
    for k, r in enumerate((AF+8, AF+12, AY+8, AY+12)):
        a(f"ds_write_b128 {vr(T0)}, {vr(r,4)} offset:{1024*k}")
    a("s_branch RED_X")
    a("RED_H1:")
    for k, r in enumerate((AF, AF+4, AY, AY+4)):
        a(f"ds_write_b128 {vr(T0)}, {vr(r,4)} offset:{1024*k}")
    for k in range(8):
        a(f"v_mov_b32 {vr(AF+k)}, {vr(AF+8+k)}")
        a(f"v_mov_b32 {vr(AY+k)}, {vr(AY+8+k)}")
    a("RED_X:")
    a("s_waitcnt lgkmcnt(0)")
    a("s_barrier")
    RB = 160
    for k in range(4):
        a(f"ds_read_b128 {vr(RB+4*k,4)}, {vr(T1)} offset:{1024*k}")
    STt = 200
    a(f"ds_read_b128 {vr(STt,4)}, {vr(vSo)}")
    a(f"ds_read_b128 {vr(STt+4,4)}, {vr(vSo)} offset:32")
    a(f"ds_read_b128 {vr(STt+8,4)}, {vr(vSo)} offset:512")
    a(f"ds_read_b128 {vr(STt+12,4)}, {vr(vSo)} offset:544")
    a("s_waitcnt lgkmcnt(4)")
    for k in range(8):
        a(f"v_add_f32 {vr(AF+k)}, {vr(AF+k)}, {vr(RB+k)}")
        a(f"v_add_f32 {vr(AY+k)}, {vr(AY+k)}, {vr(RB+8+k)}")
    Fv = list(range(AF, AF+8)); Tm = list(range(64, 72))
    for s in silu_ops(Fv, Tm): a(s)
    for v in Fv: a(f"v_cvt_pk_bf16_f32 {vr(v)}, 0, {vr(v)}")
    a("s_waitcnt vmcnt(0) lgkmcnt(0)")
    a(f"v_lshlrev_b32 {vr(vDk)}, 16, {vr(vDk)}")
    for ii in range(8):
        x = XV + ii; t = 64 + ii; nm = STt + 8 + ii; rs = STt + ii
        a(f"v_lshlrev_b32 {vr(x)}, 16, {vr(x)}")
        a(f"v_add_f32 {vr(t)}, {vr(x)}, {vr(nm)}")
        a(f"v_cvt_pk_bf16_f32 {vr(t)}, 0, {vr(t)}")
        a(f"v_mul_f32 {vr(t)}, {vr(t)}, {vr(rs)}")
        a(f"v_cvt_pk_bf16_f32 {vr(t)}, 0, {vr(t)}")
        a(f"v_mul_f32 {vr(t)}, {vr(t)}, {vr(vDk)}")
        a(f"v_cvt_pk_bf16_f32 {vr(t)}, 0, {vr(t)}")
        a(f"v_fma_f32 {vr(t)}, 2.0, {vr(AY+ii)}, {vr(t)}")
        a(f"v_mul_f32 {vr(t)}, {vr(t)}, {vr(AF+ii)}")
        a(f"v_add_f32 {vr(t)}, {vr(t)}, {vr(x)}")
        ro = 8 * (ii >> 2) + (ii & 3)
        if ro * 2048 < 4096:
            a(f"buffer_store_dword {vr(t)}, {vr(vOo)}, s[{SO}:{SO+3}], 0 offen offset:{ro*2048}")
        else:
            a(f"s_mov_b32 s9, {ro*2048}")
            a(f"buffer_store_dword {vr(t)}, {vr(vOo)}, s[{SO}:{SO+3}], s9 offen")
    stamp(a)
    if STAMPS:
        a("s_waitcnt vmcnt(0)")
        stamp(a)
        a(f"s_lshl_b32 s6, s2, 3")
        a(f"s_add_u32 s6, s6, s{sW}")
        a("s_lshl_b32 s6, s6, 8")
        a(f"s_add_u32 s6, s6, 0xD00000")
        a(f"v_lshlrev_b32 {vr(T0)}, 2, {vr(vL)}")
        a(f"buffer_store_dword {vr(VST)}, {vr(T0)}, s[{SWS}:{SWS+3}], s6 offen")
    a("K_END:")
    a("s_endpgm")

    a("CENTER:")
    a(f"v_xor_b32 {vr(vD)}, s{sDX}, {vr(vD0)}")
    a(f"s_mov_b32 m0, s{sDM}")
    a(f"buffer_load_dwordx4 {vr(vD)}, s[{SBD}:{SBD+3}], s{sDS} offen lds")
    a(f"s_add_u32 s{sDS}, s{sDS}, s{sDstepS}")
    a(f"s_add_u32 s{sDM}, s{sDM}, s{sDstepM}")
    a(f"s_add_u32 s{sDX}, s{sDX}, s{sDstepX}")
    a(f"s_set_gpr_idx_on s{sIDX}, gpr_idx(SRC0)")
    a("s_nop 0")
    for d in range(8):
        a(f"v_dot2_f32_bf16 {vr(CT[2*d])}, {vr(128+d)}, s{sLO}, {vr(vNMc)}")
        a(f"v_dot2_f32_bf16 {vr(CT[2*d+1])}, {vr(128+d)}, s{sHI}, {vr(vNMc)}")
    a("s_set_gpr_idx_mode gpr_idx(DST)")
    a("s_nop 1")
    for d in range(8):
        a(f"v_cvt_pk_bf16_f32 {vr(128+d)}, {vr(CT[2*d])}, {vr(CT[2*d+1])}")
    a("s_set_gpr_idx_off")
    a(f"s_add_u32 s{sIDX}, s{sIDX}, 8")
    a(f"s_sub_u32 s{sCNT}, s{sCNT}, 1")
    a(f"s_cmp_lg_u32 s{sCNT}, 0")
    a("s_cbranch_scc1 CENTER")
    a.flush()
    a(f"s_setpc_b64 s[{sRET}:{sRET+1}]")

    a("P2LOOP:")
    a("s_waitcnt vmcnt(12)")
    a("P2B:")
    a(f"v_add_u32 {vr(vA1)}, s{sSL}, {vr(vR1)}")
    a(f"v_add_u32 {vr(vA2)}, s{sSL}, {vr(vR2)}")
    a(f"v_xor_b32 {vr(vA1b)}, 32, {vr(vA1)}")
    a("s_barrier")
    for k in range(2):
        a(f"ds_read_b128 {vr(F1(k),4)}, {vr(vA1b if k else vA1)}")
        a(f"ds_read_b64_tr_b16 {vr(F2(k),2)}, {vr(vA2)} offset:{2048*k}")
        a(f"ds_read_b64_tr_b16 {vr(F2(k)+2,2)}, {vr(vA2)} offset:{2048*k+512}")
    a(f"s_sub_u32 s6, s{sSL}, {SLOT}")
    a(f"s_and_b32 s6, s6, {SLOT*NSLOT-1}")
    a(f"s_cmp_gt_u32 s{sIT}, 36")
    a("s_cbranch_scc1 P2NODMA")
    a(f"s_add_u32 m0, s{sM2}, s6")
    a(f"buffer_load_dwordx4 {vr(vP2)}, s[{SP2}:{SP2+3}], s{sP2s} offen sc1 lds")
    a(f"s_add_u32 s{sP2s}, s{sP2s}, s{sP2st}")
    a(f"s_add_u32 m0, s{sM1}, s6")
    a(f"buffer_load_dwordx4 {vr(vP1)}, s[{SP1}:{SP1+3}], s{sP1s} offen sc1 lds")
    a(f"s_add_u32 s{sP1s}, s{sP1s}, s{sP1st}")
    a("P2NODMA:")
    a(f"s_add_u32 s{sSL}, s{sSL}, {SLOT}")
    a(f"s_and_b32 s{sSL}, s{sSL}, {SLOT*NSLOT-1}")
    a(f"s_add_u32 s{sIT}, s{sIT}, 1")
    a(f"s_cmp_eq_u32 s{sTY}, 1")
    a("s_cbranch_scc1 P2Y")
    for k in range(2):
        a(f"s_waitcnt lgkmcnt({3-3*k})")
        a(f"v_mfma_f32_32x32x16_bf16 {vr(AF,16)}, {vr(F1(k),4)}, {vr(F2(k),4)}, {vr(AF,16)}")
    a("s_branch P2E")
    a.hist = []
    a.lines.append("P2Y:")
    for k in range(2):
        a(f"s_waitcnt lgkmcnt({3-3*k})")
        a(f"v_mfma_f32_32x32x16_bf16 {vr(AY,16)}, {vr(F2(k),4)}, {vr(F1(k),4)}, {vr(AY,16)}")
    a.hist = []
    a.lines.append("P2E:")
    a(f"s_cmp_lt_u32 s{sIT}, s{sSTOP}")
    a("s_cbranch_scc1 P2LOOP")
    a("s_nop 7")
    a("s_nop 7")
    a(f"s_setpc_b64 s[{sRET}:{sRET+1}]")
    a("CODE_END:")
    return a

def gen_pre():
    a = Asm()
    a("s_cmp_ge_u32 s2, 17")
    a("s_cbranch_scc1 PRE_END")
    a("s_load_dwordx2 s[4:5], s[0:1], 112")
    a("v_lshlrev_b32 v1, 4, v0")
    a("s_lshl_b32 s6, s2, 12")
    a(f"s_add_u32 s6, s6, {WS_E}")
    for k in range(4): a(f"v_mov_b32 v{2+k}, 0")
    a("s_waitcnt lgkmcnt(0)")
    srd(a, 8, 4, 5, WS_SIZE)
    a("buffer_store_dwordx4 v[2:5], v1, s[8:11], s6 offen")
    a("PRE_END:")
    a("s_endpgm")
    return a

def kd(name, vgpr, accum, sgpr=102):
    return f""".section .rodata,"a"
.p2align 6
.amdhsa_kernel {name}
  .amdhsa_next_free_vgpr {vgpr}
  .amdhsa_next_free_sgpr {sgpr}
  .amdhsa_accum_offset {accum}
  .amdhsa_group_segment_fixed_size 0
  .amdhsa_kernarg_size 120
  .amdhsa_user_sgpr_count 2
  .amdhsa_user_sgpr_kernarg_segment_ptr 1
  .amdhsa_system_sgpr_workgroup_id_x 1
.end_amdhsa_kernel
"""

def main(out):
    ref = open("cdna_kernels/" + NAME + ".s.ref").read().split("\n")
    hdr = [l for l in ref if l.startswith(";") and "@launch" not in l and "Override" not in l and "grid=ceil" not in l]
    k = gen()
    kn = "main_kernel"
    s = "\n".join(hdr) + "\n"
    s += "; @launch kernel=pre_kernel grid=(17,1,1) block=(256,1,1) lds=0\n"
    s += "; @launch kernel=main_kernel grid=(256,1,1) block=(512,1,1) lds=163840\n"
    s += '.amdgcn_target "amdgcn-amd-amdhsa--gfx950"\n.text\n'
    s += f".globl pre_kernel\n.p2align 8\n.type pre_kernel,@function\npre_kernel:\n" + gen_pre().text()
    s += f".globl {kn}\n.p2align 8\n.type {kn},@function\n{kn}:\n"
    s += k.text()
    s += kd("pre_kernel", 16, 16, 32) + kd(kn, 256, 256)
    open(out, "w").write(s)
    print("instrs", k.count, "bytes", len(s), "stamps", _nst[0])

if __name__ == "__main__":
    if "--stamps" in sys.argv:
        STAMPS = True; sys.argv.remove("--stamps")
    main(sys.argv[1] if len(sys.argv) > 1 else "f1.s")
```

```python
import sys, struct, os
from asmlib import Asm

NAME = "recurrent_scan__ssm_conv_s5__dense_activation_silu__prompt"
WS_H1 = 0
WS_HH = 0x800000
WS_E = 0xD00000
WS_F1 = 0xD10000
WS_F2 = 0xD10800
WS_ST = 0xE00000
WS_SIZE = 0xF00000
LOG2E = 0x3fb8aa3b
INV2PI = "0.15915494309189535"
SLOT = 16384
NSLOT = 8
R2 = 131072
SCR = R2
EV_HHP = int(os.environ.get("EV_HHP", 7))
EV_HHF = int(os.environ.get("EV_HHF", 4))
TOUCH = os.environ.get("TOUCH", "BCDE")

def vr(b, n=1):
    return f"v{b}" if n == 1 else f"v[{b}:{b+n-1}]"
def flit(x):
    return hex(struct.unpack('<I', struct.pack('<f', float(x)))[0])

STAMPS = False
VST = 30
_nst = [0]
def stamp(a, tag=None):
    if not STAMPS: return
    a.flush()
    a("s_memtime s[98:99]")
    a("s_waitcnt lgkmcnt(0)")
    a(f"v_writelane_b32 {vr(VST)}, s98, {_nst[0]}")
    _nst[0] += 1

class Rec:
    def __init__(self): self.l = []
    def __call__(self, s): self.l.append(s)

def set_exec(a, m):
    a(f"s_mov_b32 exec_lo, {hex(m & 0xffffffff)}")
    a(f"s_mov_b32 exec_hi, {hex((m >> 32) & 0xffffffff)}")

def srd(a, s, lo, hi, size):
    a(f"s_mov_b32 s{s}, s{lo}")
    a(f"s_mov_b32 s{s+1}, s{hi}")
    a(f"s_mov_b32 s{s+2}, {size}")
    a(f"s_mov_b32 s{s+3}, 0x20000")

def cexp(a, dr, di, zr2, zi2, n, t0, t1):
    if isinstance(n, str):
        a(f"v_mul_f32 {vr(t0)}, {n}, {vr(zr2)}")
        a(f"v_mul_f32 {vr(t1)}, {n}, {vr(zi2)}")
    elif n == 1:
        a(f"v_mov_b32 {vr(t0)}, {vr(zr2)}")
        a(f"v_mov_b32 {vr(t1)}, {vr(zi2)}")
    else:
        a(f"v_mul_f32 {vr(t0)}, {flit(n)}, {vr(zr2)}")
        a(f"v_mul_f32 {vr(t1)}, {flit(n)}, {vr(zi2)}")
    a(f"v_exp_f32 {vr(t0)}, {vr(t0)}")
    a(f"v_fract_f32 {vr(t1)}, {vr(t1)}")
    a(f"v_cos_f32 {vr(dr)}, {vr(t1)}")
    a(f"v_sin_f32 {vr(di)}, {vr(t1)}")
    a(f"v_mul_f32 {vr(dr)}, {vr(dr)}, {vr(t0)}")
    a(f"v_mul_f32 {vr(di)}, {vr(di)}, {vr(t0)}")

def red4(a, v, t):
    a(f"v_mov_b32 {vr(t)}, {vr(v)}")
    a(f"v_permlane16_swap_b32 {vr(v)}, {vr(t)}")
    a(f"v_add_f32 {vr(v)}, {vr(v)}, {vr(t)}")
    a(f"v_mov_b32 {vr(t)}, {vr(v)}")
    a(f"v_permlane32_swap_b32 {vr(v)}, {vr(t)}")
    a(f"v_add_f32 {vr(v)}, {vr(v)}, {vr(t)}")

def cfma(a, sr_, si_, lr, li, pr, pi):
    a(f"v_fmac_f32 {vr(sr_)}, {vr(lr)}, {vr(pr)}")
    a(f"v_fmac_f32 {vr(si_)}, {vr(lr)}, {vr(pi)}")
    a(f"v_fma_f32 {vr(sr_)}, -{vr(li)}, {vr(pi)}, {vr(sr_)}")
    a(f"v_fmac_f32 {vr(si_)}, {vr(li)}, {vr(pr)}")

def silu_ops(vals, tmp):
    o = []
    for v in vals: o.append(f"v_cvt_pk_bf16_f32 {vr(v)}, 0, {vr(v)}")
    for v, t in zip(vals, tmp): o.append(f"v_mul_f32 {vr(t)}, 0xbfb8aa3b, {vr(v)}")
    for v, t in zip(vals, tmp): o.append(f"v_exp_f32 {vr(t)}, {vr(t)}")
    for v, t in zip(vals, tmp): o.append(f"v_add_f32 {vr(t)}, 1.0, {vr(t)}")
    for v, t in zip(vals, tmp): o.append(f"v_rcp_f32 {vr(t)}, {vr(t)}")
    for v, t in zip(vals, tmp): o.append(f"v_mul_f32 {vr(v)}, {vr(v)}, {vr(t)}")
    return o

def merge(a, main, fill):
    nm = sum(1 for m in main if m.startswith("v_mfma"))
    fi = 0; seen = 0
    def put(x):
        if isinstance(x, (tuple, list)):
            for y in x: a(y)
        else: a(x)
    for m in main:
        a(m)
        if m.startswith("v_mfma"):
            seen += 1
            tgt = (len(fill) * seen) // nm
            while fi < tgt:
                put(fill[fi]); fi += 1
    while fi < len(fill):
        put(fill[fi]); fi += 1

def gen():
    a = Asm()
    XA = lambda fa, kb: 128 + (fa * 16 + kb) * 4
    FB = lambda n: 64 + 4 * (n & 7)
    ACC = [96, 100]
    EV = list(range(104, 112)); ET = list(range(112, 120))
    PK = 120
    CSF = 124
    SA = lambda ri, fa: 32 + ri * 8 + fa * 4
    vL, vI, vQ = 1, 2, 3
    T0, T1, T2, T3, T4, T5 = 4, 5, 6, 7, 8, 9
    vXB = [10, 11, 12, 13]
    vTC = [14, 15]
    vCSa = 16
    vTN = 17
    vFP, vFF, vD0, vD, vW1, vXD = 18, 19, 20, 21, 22, 23
    vNM = [24, 25]; vRS = [26, 27]
    vCS = [28, 31]
    vH1 = 29
    vZR, vZI, vLr, vLi, vCr, vCi = 48, 49, 50, 51, 52, 53
    vPr, vPi = 54, 55
    vONE = 56
    vPm = [60, 61, 62]
    sW, sC, sG = 3, 4, 5
    SX, SW1, SBD, SWS, SP1, SP2, SO = 48, 52, 56, 60, 64, 68, 72
    sRG, sH, sHH, sCT = 76, 77, 78, 79
    sWM = 88
    sRET = 96
    a("s_cmp_ge_u32 s2, 256")
    a("s_cbranch_scc1 K_END")
    a("s_load_dwordx16 s[16:31], s[0:1], 0")
    a("s_load_dwordx2 s[32:33], s[0:1], 64")
    a("s_load_dwordx8 s[36:43], s[0:1], 80")
    a("s_load_dwordx2 s[34:35], s[0:1], 112")
    a("s_getpc_b64 s[44:45]")
    a(f"v_lshlrev_b32 {vr(T0)}, 7, v0")
    a(f"v_min_u32 {vr(T0)}, CODE_END-main_kernel-64, {vr(T0)}")
    a(f"global_load_dword {vr(63)}, {vr(T0)}, s[44:45]")
    if STAMPS: a(f"v_mov_b32 {vr(VST)}, 0")
    stamp(a)
    a(f"v_lshrrev_b32 {vr(T0)}, 6, v0")
    a(f"v_readfirstlane_b32 s{sW}, {vr(T0)}")
    a(f"v_and_b32 {vr(vL)}, 63, v0")
    a(f"v_and_b32 {vr(vI)}, 15, v0")
    a(f"v_lshrrev_b32 {vr(vQ)}, 4, {vr(vL)}")
    a("s_and_b32 s6, s2, 6")
    a("s_lshl_b32 s6, s6, 1")
    a("s_lshr_b32 s7, s2, 3")
    a("s_and_b32 s7, s7, 3")
    a(f"s_add_u32 s{sC}, s6, s7")
    a(f"s_and_b32 s{sHH}, s2, 1")
    a(f"s_lshr_b32 s{sCT}, s2, 5")
    a(f"s_lshl_b32 s6, s{sHH}, 3")
    a(f"s_add_u32 s{sG}, s6, s{sCT}")
    a(f"s_and_b32 s{sRG}, s{sW}, 3")
    a(f"s_lshr_b32 s{sH}, s{sW}, 2")
    a(f"s_and_b32 s6, s{sW}, 1")
    a("s_lshl_b32 s6, s6, 3")
    a(f"v_xor_b32 {vr(vXD)}, s6, {vr(vL)}")
    a(f"v_lshlrev_b32 {vr(vXD)}, 4, {vr(vXD)}")
    a(f"s_lshl_b32 s8, s{sC}, 7")
    a(f"s_lshl_b32 s7, s{sW}, 4")
    a("s_add_u32 s8, s8, s7")
    a("s_lshl_b32 s8, s8, 10")
    a(f"s_lshl_b32 s9, s{sW}, 13")
    a(f"s_lshl_b32 s6, s{sRG}, 2")
    a(f"v_xor_b32 {vr(vD0)}, s6, {vr(vL)}")
    a(f"v_lshlrev_b32 {vr(vD0)}, 4, {vr(vD0)}")
    a(f"s_lshl_b32 s13, s{sG}, 5")
    a(f"s_lshl_b32 s6, s{sW}, 2")
    a("s_add_u32 s13, s13, s6")
    a("s_lshl_b32 s13, s13, 10")
    a(f"s_lshl_b32 s14, s{sW}, 12")
    a("s_waitcnt lgkmcnt(0)")
    srd(a, SX, 16, 17, 2097152)
    for fa in range(2):
        for n in range(8):
            a(f"v_xor_b32 {vr(vD)}, {n<<4}, {vr(vXD)}")
            a(f"s_add_u32 m0, s9, {fa*65536 + n*1024}")
            a(f"s_add_u32 s10, s8, {(8*(n>>2) + (n&3) + 4*fa)*1024}")
            a(f"buffer_load_dwordx4 {vr(vD)}, s[{SX}:{SX+3}], s10 offen lds")
    srd(a, SBD, 22, 23, 524288)
    def bdma(n):
        return (f"v_xor_b32 {vr(vD)}, {n<<4}, {vr(vD0)}",
                f"s_add_u32 m0, s14, {R2 + 1024*n}",
                f"s_add_u32 s10, s13, {1024*n}",
                f"buffer_load_dwordx4 {vr(vD)}, s[{SBD}:{SBD+3}], s10 offen lds")
    for n in range(4):
        for s in bdma(n): a(s)
    srd(a, SW1, 36, 37, 1835008)
    srd(a, SWS, 34, 35, WS_SIZE)
    a(f"s_lshl_b32 s6, s{sG}, 6")
    a(f"s_lshl_b32 s7, s{sH}, 5")
    a("s_add_u32 s6, s6, s7")
    a(f"v_lshl_add_u32 {vr(T1)}, {vr(vI)}, 1, s6")
    a(f"global_load_ushort {vr(vPm[0])}, {vr(T1)}, s[18:19]")
    a(f"global_load_ushort {vr(vPm[1])}, {vr(T1)}, s[20:21]")
    a(f"global_load_ushort {vr(vPm[2])}, {vr(T1)}, s[30:31]")
    sJ = 100
    a(f"s_lshr_b32 s{sJ}, s2, 3")
    if "A" in TOUCH:
        a(f"s_cmp_ge_u32 s{sW}, 4")
        a("s_cbranch_scc1 TA_B")
        a(f"s_lshl_b32 s6, s{sJ}, 4")
        a(f"s_lshl_b32 s7, s{sW}, 2")
        a("s_add_u32 s6, s6, s7")
        a(f"v_add_u32 {vr(T0)}, s6, {vr(vQ)}")
        a("s_movk_i32 s6, 3584")
        a(f"v_mul_lo_u32 {vr(T0)}, {vr(T0)}, s6")
        a(f"v_min_u32 {vr(T1)}, 13, {vr(vI)}")
        a(f"v_lshl_add_u32 {vr(T0)}, {vr(T1)}, 7, {vr(T0)}")
        a(f"s_mul_i32 s6, s{sHH}, 1792")
        a(f"buffer_load_dword {vr(63)}, {vr(T0)}, s[{SW1}:{SW1+3}], s6 offen")
        a("s_branch TA_X")
        a("TA_B:")
        a(f"s_lshl_b32 s6, s{sJ}, 6")
        a(f"s_lshl_b32 s7, s{sRG}, 4")
        a("s_add_u32 s6, s6, s7")
        a(f"s_lshl_b32 s7, s{sHH}, 11")
        a("s_add_u32 s6, s6, s7")
        a(f"v_add_u32 {vr(T0)}, s6, {vr(vI)}")
        a(f"v_lshlrev_b32 {vr(T0)}, 7, {vr(T0)}")
        a(f"global_load_dword {vr(63)}, {vr(T0)}, s[24:25]")
        a("TA_X:")
    a(f"s_lshr_b32 s6, s{sW}, 1")
    a("s_and_b32 s6, s6, 1")
    a("s_lshl_b32 s6, s6, 2")
    a(f"v_or_b32 {vr(T0)}, s6, {vr(vQ)}")
    a(f"v_lshrrev_b32 {vr(T1)}, 1, {vr(vI)}")
    a(f"v_xor_b32 {vr(T0)}, {vr(T0)}, {vr(T1)}")
    a(f"v_cmp_ne_u32 s[{sWM}:{sWM+1}], 7, {vr(T0)}")
    a(f"v_lshlrev_b32 {vr(T0)}, 5, {vr(T0)}")
    a(f"v_and_b32 {vr(T1)}, 1, {vr(vI)}")
    a(f"v_lshl_add_u32 {vr(T0)}, {vr(T1)}, 4, {vr(T0)}")
    a("s_movk_i32 s6, 3584")
    a(f"v_mul_lo_u32 {vr(T1)}, {vr(vQ)}, s6")
    a(f"v_add_u32 {vr(T0)}, {vr(T0)}, {vr(T1)}")
    a(f"s_mul_i32 s6, s{sG}, 224")
    a(f"v_add_u32 {vr(vW1)}, s6, {vr(T0)}")
    a(f"s_mul_i32 s11, s{sW}, 14336")
    a(f"s_lshl_b32 s12, s{sW}, 10")
    def w1dma(n):
        return (f"s_add_u32 m0, s12, {8192*n}",
                f"s_add_u32 s10, s11, {8*14336*n}",
                f"s_mov_b64 exec, s[{sWM}:{sWM+1}]",
                f"buffer_load_dwordx4 {vr(vW1)}, s[{SW1}:{SW1+3}], s10 offen lds",
                "s_mov_b64 exec, -1")
    a(f"s_lshl_b32 s6, s{sRG}, 4")
    a(f"v_add_u32 {vr(T0)}, s6, {vr(vI)}")
    a(f"v_lshlrev_b32 {vr(T0)}, 10, {vr(T0)}")
    for j in range(4):
        a(f"v_or_b32 {vr(T1)}, {4*j}, {vr(vQ)}")
        a(f"v_xor_b32 {vr(T1)}, {vr(T1)}, {vr(vI)}")
        a(f"v_lshl_add_u32 {vr(vXB[j])}, {vr(T1)}, 4, {vr(T0)}")
    for k in range(4): a(f"v_mov_b32 {vr(vONE+k)}, 0x3f803f80")
    a(f"v_bfe_u32 {vr(T0)}, {vr(vL)}, 2, 2")
    a(f"v_lshl_add_u32 {vr(T1)}, {vr(vQ)}, 3, {vr(T0)}")
    a(f"v_lshlrev_b32 {vr(T1)}, 8, {vr(T1)}")
    a(f"v_and_b32 {vr(T2)}, 3, {vr(vL)}")
    a(f"v_lshl_add_u32 {vr(vFP)}, {vr(T2)}, 3, {vr(T1)}")
    a(f"v_and_b32 {vr(T2)}, 1, {vr(vQ)}")
    a(f"v_lshl_add_u32 {vr(T0)}, {vr(T2)}, 2, {vr(T0)}")
    a(f"v_lshlrev_b32 {vr(vFF)}, 5, {vr(T0)}")
    a(f"v_lshrrev_b32 {vr(T0)}, 2, {vr(vI)}")
    a(f"v_lshlrev_b32 {vr(T0)}, 3, {vr(T0)}")
    a(f"v_and_b32 {vr(T1)}, 3, {vr(vI)}")
    a(f"v_add_u32 {vr(T0)}, {vr(T0)}, {vr(T1)}")
    a(f"v_lshl_add_u32 {vr(T0)}, {vr(T2)}, 2, {vr(T0)}")
    a(f"v_lshlrev_b32 {vr(T0)}, 5, {vr(T0)}")
    a(f"v_lshrrev_b32 {vr(T3)}, 1, {vr(vQ)}")
    a(f"v_lshl_add_u32 {vr(vH1)}, {vr(T3)}, 4, {vr(T0)}")
    a(f"v_lshlrev_b32 {vr(T3)}, 12, {vr(T3)}")
    a(f"v_lshl_add_u32 {vr(T3)}, {vr(T2)}, 4, {vr(T3)}")
    a(f"v_add_u32 {vr(vCSa)}, 224, {vr(T3)}")
    a(f"v_cmp_eq_u32 s[90:91], 1, {vr(T1)}")
    a(f"v_cmp_eq_u32 s[92:93], 2, {vr(T1)}")
    a(f"v_cmp_eq_u32 s[94:95], 3, {vr(T1)}")
    a(f"v_lshrrev_b32 {vr(T1)}, 2, {vr(vI)}")
    a(f"v_cmp_eq_u32 s[46:47], {vr(T1)}, {vr(vQ)}")
    stamp(a)

    def process_fa(fa, fill):
        AS, AQ = 96, 100
        m = []
        for kb in range(16):
            c = "0" if kb == 0 else vr(AS, 4)
            m.append(f"v_mfma_f32_16x16x32_bf16 {vr(AS,4)}, {vr(vONE,4)}, {vr(XA(fa,kb),4)}, {c}")
        for kb in range(16):
            c = "0" if kb == 0 else vr(AQ, 4)
            m.append(f"v_mfma_f32_16x16x32_bf16 {vr(AQ,4)}, {vr(XA(fa,kb),4)}, {vr(XA(fa,kb),4)}, {c}")
            if kb == 3:
                m.append(f"v_mul_f32 {vr(T4)}, 0xbb000000, {vr(AS)}")
                m.append(f"v_cvt_pk_bf16_f32 {vr(vNM[fa])}, 0, {vr(T4)}")
        merge(a, m, fill)
        a(f"v_cndmask_b32 {vr(T0)}, {vr(AQ)}, {vr(AQ+1)}, s[90:91]")
        a(f"v_cndmask_b32 {vr(T0)}, {vr(T0)}, {vr(AQ+2)}, s[92:93]")
        a(f"v_cndmask_b32 {vr(T0)}, {vr(T0)}, {vr(AQ+3)}, s[94:95]")
        a(f"v_cndmask_b32 {vr(T0)}, 0, {vr(T0)}, s[46:47]")
        red4(a, T0, T1)
        a(f"v_mul_f32 {vr(T0)}, 0x3b000000, {vr(T0)}")
        a(f"v_fma_f32 {vr(T0)}, -{vr(T4)}, {vr(T4)}, {vr(T0)}")
        a(f"v_max_f32 {vr(T0)}, 0, {vr(T0)}")
        a(f"v_cvt_pk_bf16_f32 {vr(T0)}, 0, {vr(T0)}")
        a(f"v_add_f32 {vr(T0)}, 0x3727c5ac, {vr(T0)}")
        a(f"v_cvt_pk_bf16_f32 {vr(T0)}, 0, {vr(T0)}")
        a(f"v_sqrt_f32 {vr(T0)}, {vr(T0)}")
        a(f"v_cvt_pk_bf16_f32 {vr(T0)}, 0, {vr(T0)}")
        a(f"v_rcp_f32 {vr(vRS[fa])}, {vr(T0)}")

    def call(label):
        a.flush()
        a(f"s_call_b64 s[{sRET}:{sRET+1}], {label}")
        a.flush()

    def read_x(fa):
        for kb in range(16):
            a(f"ds_read_b128 {vr(XA(fa,kb),4)}, {vr(vXB[kb&3])} offset:{(kb>>2)*256}")

    a(f"s_waitcnt vmcnt({16 if 'A' in TOUCH else 15})")
    a("s_barrier")
    stamp(a)
    read_x(0)
    for j in range(4): a(f"v_add_u32 {vr(vXB[j])}, 0x10000, {vr(vXB[j])}")
    a("s_waitcnt lgkmcnt(0)")
    a("s_barrier")
    process_fa(0, [w1dma(n) for n in range(8)])
    stamp(a)
    a("s_waitcnt vmcnt(8)")
    a("s_barrier")
    read_x(1)
    a(f"s_lshl_b32 s6, s{sH}, 14")
    a(f"s_lshl_b32 s7, s{sRG}, 14")
    a("s_sub_u32 s6, s6, s7")
    a(f"s_add_u32 s6, s6, {R2 - 65536}")
    for j in range(4): a(f"v_add_u32 {vr(vXB[j])}, s6, {vr(vXB[j])}")
    a("s_waitcnt lgkmcnt(0)")
    a("s_barrier")
    stamp(a)
    process_fa(1, [w1dma(n) for n in range(8, 16)])
    stamp(a)
    def brd(kb):
        return f"ds_read_b128 {vr(FB(kb),4)}, {vr(vXB[kb&3])} offset:{(kb>>2)*256}"
    def ssm_main(ri):
        m = [brd(kb) for kb in range(4)]
        for kb in range(16):
            if kb + 4 < 16: m.append(brd(kb + 4))
            m.append(f"s_waitcnt lgkmcnt({min(4, 15-kb)})")
            for fa in range(2):
                c = "0" if kb == 0 else vr(SA(ri, fa), 4)
                m.append(f"v_mfma_f32_16x16x32_bf16 {vr(SA(ri,fa),4)}, {vr(XA(fa,kb),4)}, {vr(FB(kb),4)}, {c}")
            c = "0" if kb == 0 else vr(CSF, 4)
            m.append(f"v_mfma_f32_16x16x32_bf16 {vr(CSF,4)}, {vr(vONE,4)}, {vr(FB(kb),4)}, {c}")
        return m
    p = Rec()
    p(f"v_lshlrev_b32 {vr(vPm[0])}, 16, {vr(vPm[0])}")
    p(f"v_lshlrev_b32 {vr(vPm[1])}, 16, {vr(vPm[1])}")
    p(f"v_lshlrev_b32 {vr(T0)}, 16, {vr(vPm[2])}")
    p(f"v_mul_f32 {vr(T0)}, {hex(LOG2E)}, {vr(T0)}")
    p(f"v_exp_f32 {vr(T0)}, {vr(T0)}")
    p(f"v_cvt_pk_bf16_f32 {vr(T0)}, 0, {vr(T0)}")
    p(f"v_mul_f32 {vr(vZR)}, {vr(T0)}, {vr(vPm[0])}")
    p(f"v_mul_f32 {vr(vZI)}, {vr(T0)}, {vr(vPm[1])}")
    p(f"v_mul_f32 {vr(vZR)}, {hex(LOG2E)}, {vr(vZR)}")
    p(f"v_mul_f32 {vr(vZI)}, {INV2PI}, {vr(vZI)}")
    cexp(p, vLr, vLi, vZR, vZI, 1, T0, T1)
    p(f"v_add_f32 {vr(T0)}, -1.0, {vr(vLr)}")
    p(f"v_mul_f32 {vr(T1)}, {vr(vPm[0])}, {vr(vPm[0])}")
    p(f"v_fmac_f32 {vr(T1)}, {vr(vPm[1])}, {vr(vPm[1])}")
    p(f"v_rcp_f32 {vr(T1)}, {vr(T1)}")
    p(f"v_mul_f32 {vr(vCr)}, {vr(T0)}, {vr(vPm[0])}")
    p(f"v_fmac_f32 {vr(vCr)}, {vr(vLi)}, {vr(vPm[1])}")
    p(f"v_mul_f32 {vr(vCi)}, {vr(vLi)}, {vr(vPm[0])}")
    p(f"v_fma_f32 {vr(vCi)}, -{vr(T0)}, {vr(vPm[1])}, {vr(vCi)}")
    p(f"v_mul_f32 {vr(vCr)}, {vr(vCr)}, {vr(T1)}")
    p(f"v_mul_f32 {vr(vCi)}, {vr(vCi)}, {vr(T1)}")
    sT, sTE, sST, sPAR = 80, 81, 82, 83
    p(f"s_lshl_b32 s{sT}, s{sH}, 7")
    p(f"s_mul_i32 s6, s{sH}, 96")
    p(f"s_add_u32 s{sTE}, s6, 128")
    p(f"s_mul_i32 s{sST}, s{sC}, 112")
    p(f"s_mul_i32 s6, s{sG}, 7")
    p(f"s_add_u32 s{sST}, s{sST}, s6")
    p(f"s_lshl_b32 s6, s{sH}, 2")
    p(f"s_add_u32 s{sST}, s{sST}, s6")
    p(f"s_lshl_b32 s{sST}, s{sST}, 12")
    p(f"s_lshl_b32 s6, s{sRG}, 10")
    p(f"s_add_u32 s{sST}, s{sST}, s6")
    p(f"s_mov_b32 s{sPAR}, 0")
    p(f"s_lshl_b32 s7, s{sRG}, 5")
    p(f"s_add_u32 s7, s7, s{sT}")
    p(f"v_xor_b32 {vr(vTC[0])}, s7, {vr(vFF)}")
    p(f"v_add_u32 {vr(vTC[0])}, {vr(vTC[0])}, {vr(vFP)}")
    p(f"v_add_u32 {vr(vTC[1])}, 0x10000, {vr(vTC[0])}")
    p("s_lshl_b32 s7, s7, 8")
    p(f"v_add_u32 {vr(T5)}, s7, {vr(vCSa)}")
    p(f"s_lshl_b32 s7, s{sT}, 8")
    p(f"v_add_u32 {vr(vCSa)}, s7, {vr(vCSa)}")
    merge(a, ssm_main(0), p.l)
    a(f"v_mov_b32 {vr(vCS[0])}, {vr(CSF)}")
    srd(a, SBD, 24, 25, 524288)
    a("s_waitcnt vmcnt(0)")
    a("s_barrier")
    stamp(a)
    if "B" in TOUCH:
        a(f"s_mul_i32 s6, s{sJ}, 448")
        a(f"s_mul_i32 s7, s{sW}, 56")
        a("s_add_u32 s6, s6, s7")
        a(f"v_min_u32 {vr(T0)}, 55, {vr(vL)}")
        a(f"v_add_u32 {vr(T0)}, s6, {vr(T0)}")
        a(f"v_lshlrev_b32 {vr(T0)}, 7, {vr(T0)}")
        a(f"global_load_dword {vr(63)}, {vr(T0)}, s[38:39]")
    if "C" in TOUCH:
        a(f"s_cmp_eq_u32 s{sH}, 0")
        a("s_cselect_b32 s8, s26, s28")
        a("s_cselect_b32 s9, s27, s29")
        a(f"s_lshl_b32 s6, s{sJ}, 7")
        a(f"s_lshl_b32 s7, s{sRG}, 5")
        a("s_add_u32 s6, s6, s7")
        a(f"v_and_b32 {vr(T0)}, 31, {vr(vL)}")
        a(f"v_add_u32 {vr(T0)}, s6, {vr(T0)}")
        a(f"v_lshlrev_b32 {vr(T0)}, 7, {vr(T0)}")
        a(f"global_load_dword {vr(63)}, {vr(T0)}, s[8:9]")
    def trd(kb, nxt=False):
        if nxt: base, off = vTN, 8192 * kb
        elif kb < 8: base, off = vTC[0], 8192 * kb
        else: base, off = vTC[1], 8192 * (kb - 8)
        d = FB(kb)
        return [f"ds_read_b64_tr_b16 {vr(d,2)}, {vr(base)} offset:{off}",
                f"ds_read_b64_tr_b16 {vr(d+2,2)}, {vr(base)} offset:{off+1024}"]
    m = []
    for kb in range(6): m += trd(kb)
    for kb in range(16):
        if kb + 6 < 16: m += trd(kb + 6)
        m.append(f"s_waitcnt lgkmcnt({2*min(6, 15-kb)})")
        c = "0" if kb == 0 else vr(CSF, 4)
        m.append(f"v_mfma_f32_16x16x32_bf16 {vr(CSF,4)}, {vr(FB(kb),4)}, {vr(vONE,4)}, {c}")
    merge(a, m, [bdma(n) for n in range(4)])
    a(f"v_xor_b32 {vr(vTC[0])}, s{sT}, {vr(vFF)}")
    a(f"v_add_u32 {vr(vTC[0])}, {vr(vTC[0])}, {vr(vFP)}")
    a(f"v_add_u32 {vr(vTC[1])}, 0x10000, {vr(vTC[0])}")
    for kb in range(4):
        for s in trd(kb): a(s)
    set_exec(a, 0x0001000100010001)
    a(f"ds_write_b128 {vr(T5)}, {vr(CSF,4)}")
    a("s_mov_b64 exec, -1")
    a("s_waitcnt lgkmcnt(0)")
    a("s_barrier")
    stamp(a)
    def epi_ops():
        o = silu_ops(EV, ET)
        for k in range(4):
            o.append(f"v_cvt_pk_bf16_f32 {vr(PK+k)}, {vr(EV[2*k])}, {vr(EV[2*k+1])}")
        return o
    def epi_head():
        for k in range(8):
            a(f"v_fma_f32 {vr(EV[k])}, {vr(vNM[k>>2])}, {vr(CSF + (k&3))}, {vr(ACC[k>>2] + (k&3))}")
        for k in range(8):
            a(f"v_mul_f32 {vr(EV[k])}, {vr(EV[k])}, {vr(vRS[k>>2])}")
    def tile_store():
        a(f"v_permlane16_swap_b32 {vr(PK)}, {vr(PK+2)}")
        a(f"v_permlane16_swap_b32 {vr(PK+1)}, {vr(PK+3)}")
        a(f"buffer_store_dwordx4 {vr(PK,4)}, {vr(vH1)}, s[{SWS}:{SWS+3}], s{sST} offen sc1")
        a(f"s_add_u32 s{sST}, s{sST}, 4096")
    a("FFN_LOOP:")
    epi_head()
    a(f"ds_read_b128 {vr(CSF,4)}, {vr(vCSa)}")
    a(f"v_add_u32 {vr(vCSa)}, 0x2000, {vr(vCSa)}")
    a(f"s_add_u32 s{sT}, s{sT}, 32")
    a(f"v_xor_b32 {vr(vTN)}, s{sT}, {vr(vFF)}")
    a(f"v_add_u32 {vr(vTN)}, {vr(vTN)}, {vr(vFP)}")
    main = []
    for kb in range(16):
        main += trd(kb + 4) if kb + 4 < 16 else trd(kb + 4 - 16, True)
        main.append("s_waitcnt lgkmcnt(8)")
        for fa in range(2):
            c = "0" if kb == 0 else vr(ACC[fa], 4)
            main.append(f"v_mfma_f32_16x16x32_bf16 {vr(ACC[fa],4)}, {vr(FB(kb),4)}, {vr(XA(fa,kb),4)}, {c}")
    merge(a, main, epi_ops())
    a(f"v_mov_b32 {vr(vTC[0])}, {vr(vTN)}")
    a(f"v_add_u32 {vr(vTC[1])}, 0x10000, {vr(vTN)}")
    a.flush()
    a(f"s_cmp_eq_u32 s{sPAR}, 0")
    a(f"s_mov_b32 s{sPAR}, 1")
    a("s_cbranch_scc1 FFN_NEXT")
    tile_store()
    a("FFN_NEXT:")
    a(f"s_cmp_lt_u32 s{sT}, s{sTE}")
    a("s_cbranch_scc1 FFN_LOOP")
    epi_head()
    sP1s, sP2s, sP1st, sP2st, sM1, sM2, sIT, sSTOP, sSL, sTY = 80, 81, 84, 83, 85, 86, 87, 90, 91, 92
    vP1F, vP1Y, vP2, vP1 = 14, 15, 16, 17
    a(f"v_and_b32 {vr(T0)}, 7, {vr(vL)}")
    a(f"v_lshrrev_b32 {vr(T1)}, 3, {vr(vL)}")
    a(f"s_lshl_b32 s6, s{sW}, 3")
    a(f"v_add_u32 {vr(T2)}, s6, {vr(T1)}")
    a(f"v_lshlrev_b32 {vr(T3)}, 1, {vr(vQ)}")
    a(f"v_xor_b32 {vr(T3)}, {vr(T3)}, {vr(T0)}")
    a(f"s_and_b32 s7, s{sW}, 1")
    a(f"v_xor_b32 {vr(T3)}, s7, {vr(T3)}")
    a(f"v_lshlrev_b32 {vr(T3)}, 4, {vr(T3)}")
    a(f"v_lshl_add_u32 {vr(vP1Y)}, {vr(T2)}, 10, {vr(T3)}")
    a(f"v_and_b32 {vr(T3)}, 1, {vr(vQ)}")
    a(f"v_xor_b32 {vr(T4)}, {vr(T3)}, {vr(vL)}")
    a(f"s_lshr_b32 s6, s{sW}, 1")
    a("s_lshl_b32 s6, s6, 12")
    a("s_lshl_b32 s7, s7, 10")
    a("s_add_u32 s6, s6, s7")
    a(f"v_lshl_add_u32 {vr(vP1F)}, {vr(T4)}, 4, s6")
    a(f"v_lshlrev_b32 {vr(T3)}, 2, {vr(T3)}")
    a(f"v_xor_b32 {vr(T3)}, {vr(T3)}, {vr(T0)}")
    a(f"v_lshlrev_b32 {vr(T3)}, 4, {vr(T3)}")
    a(f"v_lshl_add_u32 {vr(vP2)}, {vr(T2)}, 10, {vr(T3)}")
    vP2Y = 18
    a(f"v_lshl_add_u32 {vr(vP2Y)}, {vr(T2)}, 7, {vr(T3)}")
    a(f"v_mov_b32 {vr(vP1)}, {vr(vP1F)}")
    srd(a, SP2, 38, 39, 1835008)
    for k in range(4): a(f"s_mov_b32 s{SP1+k}, s{SWS+k}")
    a(f"s_lshl_b32 s{sP2s}, s{sCT}, 7")
    a(f"s_mov_b32 s{sP2st}, 65536")
    a(f"s_lshl_b32 s{sM1}, s{sW}, 10")
    a(f"s_add_u32 s{sM2}, s{sM1}, 8192")
    a("s_waitcnt vmcnt(2) lgkmcnt(0)")
    a("s_barrier")
    stamp(a)
    def p2_issue(slot):
        return (f"s_add_u32 m0, s{sM2}, {slot*SLOT}",
                f"buffer_load_dwordx4 {vr(vP2)}, s[{SP2}:{SP2+3}], s{sP2s} offen sc1 lds",
                f"s_add_u32 s{sP2s}, s{sP2s}, s{sP2st}")
    eo = epi_ops()
    class TS:
        pass
    ts = Rec(); _a = a
    ts(f"v_permlane16_swap_b32 {vr(PK)}, {vr(PK+2)}")
    ts(f"v_permlane16_swap_b32 {vr(PK+1)}, {vr(PK+3)}")
    ts(f"buffer_store_dwordx4 {vr(PK,4)}, {vr(vH1)}, s[{SWS}:{SWS+3}], s{sST} offen sc1")
    fill = []
    fill += eo + [tuple(ts.l)] + [p2_issue(s_) for s_ in range(8)]
    merge(a, ssm_main(1), fill)
    a(f"v_mov_b32 {vr(vCS[1])}, {vr(CSF)}")
    a("s_barrier")
    stamp(a)
    def setflag(base):
        a(f"v_mov_b32 {vr(T0)}, 1")
        a(f"s_lshl_b32 s7, s{sC}, 7")
        a(f"s_lshl_b32 s6, s{sG}, 2")
        a("s_add_u32 s7, s7, s6")
        a(f"s_add_u32 s7, s7, {base}")
        a(f"v_mov_b32 {vr(T1)}, 0")
        a("s_mov_b64 exec, 1")
        a(f"buffer_store_dword {vr(T0)}, {vr(T1)}, s[{SWS}:{SWS+3}], s7 offen sc1")
        a("s_mov_b64 exec, -1")
    def poll(tag, base):
        a.flush()
        a(f"s_cmp_lg_u32 s{sW}, 0")
        a(f"s_cbranch_scc1 POLL_OK{tag}")
        a(f"s_lshl_b32 s7, s{sC}, 7")
        a(f"s_add_u32 s7, s7, {base}")
        a(f"v_lshlrev_b32 {vr(T0)}, 2, {vr(vI)}")
        a("s_mov_b32 s15, 0")
        a(f"POLL{tag}:")
        a("s_add_u32 s15, s15, 1")
        a("s_cmp_gt_u32 s15, 0x8000")
        a(f"s_cbranch_scc1 POLL_OK{tag}")
        a(f"buffer_load_dword {vr(T1)}, {vr(T0)}, s[{SWS}:{SWS+3}], s7 offen sc1")
        a("s_waitcnt vmcnt(0)")
        a(f"v_cmp_eq_u32 vcc, 0, {vr(T1)}")
        a("s_cmp_eq_u64 vcc, 0")
        a(f"s_cbranch_scc1 POLL_OK{tag}")
        a("s_sleep 1")
        a(f"s_branch POLL{tag}")
        a(f"POLL_OK{tag}:")
        a("s_barrier")
    RE = lambda t: SA(0, t >> 2) + (t & 3)
    IM = lambda t: SA(1, t >> 2) + (t & 3)
    a(f"v_lshrrev_b32 {vr(T0)}, 2, {vr(vI)}")
    a(f"v_lshlrev_b32 {vr(T0)}, 3, {vr(T0)}")
    a(f"v_and_b32 {vr(T1)}, 3, {vr(vI)}")
    a(f"v_add_u32 {vr(T0)}, {vr(T0)}, {vr(T1)}")
    a(f"s_lshl_b32 s6, s{sRG}, 5")
    a(f"v_add_u32 {vr(T0)}, s6, {vr(T0)}")
    a(f"v_lshlrev_b32 {vr(T0)}, 2, {vr(T0)}")
    a(f"v_add_u32 {vr(T0)}, {SCR}, {vr(T0)}")
    a(f"ds_write_b32 {vr(T0)}, {vr(vRS[0])}")
    a(f"ds_write_b32 {vr(T0)}, {vr(vRS[1])} offset:16")
    a(f"ds_write_b32 {vr(T0)}, {vr(vNM[0])} offset:512")
    a(f"ds_write_b32 {vr(T0)}, {vr(vNM[1])} offset:528")
    a(f"s_lshl_b32 s6, s{sRG}, 7")
    a(f"s_add_u32 s6, s6, {SCR}")
    a(f"v_lshl_add_u32 {vr(T1)}, {vr(vQ)}, 5, s6")
    RT = 64; MT = 96
    a("s_waitcnt lgkmcnt(0)")
    a(f"ds_read_b128 {vr(RT,4)}, {vr(T1)}")
    a(f"ds_read_b128 {vr(RT+4,4)}, {vr(T1)} offset:16")
    a(f"ds_read_b128 {vr(MT,4)}, {vr(T1)} offset:512")
    a(f"ds_read_b128 {vr(MT+4,4)}, {vr(T1)} offset:528")
    L8r, L8i, L32r, L32i, LQr, LQi = 72, 73, 74, 75, 76, 77
    cexp(a, L8r, L8i, vZR, vZI, 8, T2, T3)
    cexp(a, L32r, L32i, vZR, vZI, 32, T2, T3)
    a(f"v_lshlrev_b32 {vr(T4)}, 3, {vr(vQ)}")
    a(f"v_cvt_f32_u32 {vr(T4)}, {vr(T4)}")
    cexp(a, LQr, LQi, vZR, vZI, vr(T4), T2, T3)
    a("s_waitcnt lgkmcnt(0)")
    for t in range(8):
        a(f"v_fmac_f32 {vr(RE(t))}, {vr(MT+t)}, {vr(vCS[0])}")
        a(f"v_fmac_f32 {vr(IM(t))}, {vr(MT+t)}, {vr(vCS[1])}")
        a(f"v_mul_f32 {vr(RE(t))}, {vr(RE(t))}, {vr(RT+t)}")
        a(f"v_mul_f32 {vr(IM(t))}, {vr(IM(t))}, {vr(RT+t)}")
    for t in range(1, 8):
        cfma(a, RE(t), IM(t), vLr, vLi, RE(t-1), IM(t-1))
    S0 = 78
    a(f"v_mov_b32 {vr(S0)}, {vr(RE(7))}")
    a(f"v_mov_b32 {vr(S0+1)}, {vr(IM(7))}")
    a(f"s_lshl_b32 s6, s{sW}, 9")
    a(f"s_add_u32 s6, s6, {SCR+1024}")
    a(f"v_lshl_add_u32 {vr(T0)}, {vr(vL)}, 3, s6")
    a(f"ds_write_b64 {vr(T0)}, {vr(S0,2)}")
    a(f"v_lshl_add_u32 {vr(T1)}, {vr(vI)}, 3, s6")
    a(f"v_mov_b32 {vr(vPr)}, 0")
    a(f"v_mov_b32 {vr(vPi)}, 0")
    a("s_waitcnt lgkmcnt(0)")
    PB = 80
    for k in range(3):
        a(f"ds_read_b64 {vr(PB+2*k,2)}, {vr(T1)} offset:{128*k}")
    def horner(S, lr, li, pr, pi):
        cfma(a, S, S+1, lr, li, pr, pi)
        a(f"v_mov_b32 {vr(pr)}, {vr(S)}")
        a(f"v_mov_b32 {vr(pi)}, {vr(S+1)}")
    for k in range(3):
        a(f"s_waitcnt lgkmcnt({2-k})")
        set_exec(a, (~((1 << (16*(k+1))) - 1)) & 0xffffffffffffffff)
        horner(PB+2*k, L8r, L8i, vPr, vPi)
    cfma(a, S0, S0+1, L8r, L8i, vPr, vPi)
    a(f"s_lshl_b32 s7, s{sW}, 7")
    a(f"s_add_u32 s7, s7, {SCR+1024+4096}")
    a(f"v_lshl_add_u32 {vr(T0)}, {vr(vI)}, 3, s7")
    a(f"ds_write_b64 {vr(T0)}, {vr(S0,2)}")
    a("s_mov_b64 exec, -1")
    a(f"s_lshl_b32 s7, s{sH}, 9")
    a(f"s_add_u32 s7, s7, {SCR+1024+4096}")
    a(f"v_lshl_add_u32 {vr(T0)}, {vr(vI)}, 3, s7")
    a("s_waitcnt vmcnt(8) lgkmcnt(0)")
    a("s_barrier")
    stamp(a)
    for k in range(4):
        a(f"ds_read_b64 {vr(PB+2*k,2)}, {vr(T0)} offset:{128*k}")
    a(f"s_cmp_lg_u32 s{sW}, 0")
    a("s_cbranch_scc1 NOFLAG1")
    setflag(WS_F1)
    a("NOFLAG1:")
    CWr, CWi = 88, 89
    a(f"v_mov_b32 {vr(CWr)}, 0")
    a(f"v_mov_b32 {vr(CWi)}, 0")
    a("s_waitcnt lgkmcnt(0)")
    for k in range(3):
        a.flush()
        a(f"s_cmp_le_u32 s{sRG}, {k}")
        a("s_cbranch_scc1 PFX_DONE")
        horner(PB+2*k, L32r, L32i, CWr, CWi)
    cfma(a, PB+6, PB+7, L32r, L32i, CWr, CWi)
    a(f"s_lshl_b32 s6, s{sC}, 12")
    a(f"s_lshl_b32 s7, s{sG}, 8")
    a("s_add_u32 s6, s6, s7")
    a(f"s_lshl_b32 s7, s{sH}, 7")
    a("s_add_u32 s6, s6, s7")
    a(f"s_add_u32 s6, s6, {WS_E}")
    a(f"v_lshlrev_b32 {vr(T1)}, 3, {vr(vI)}")
    a(f"v_or_b32 {vr(PB+6)}, 1, {vr(PB+6)}")
    set_exec(a, 0xffff)
    a(f"buffer_store_dwordx2 {vr(PB+6,2)}, {vr(T1)}, s[{SWS}:{SWS+3}], s6 offen sc1")
    a("s_mov_b64 exec, -1")
    a("PFX_DONE:")
    cfma(a, vPr, vPi, LQr, LQi, CWr, CWi)
    AF, AY = 128, 144
    F1 = lambda s, k: 160 + 32 * s + 8 * k
    F2 = lambda s, k: 164 + 32 * s + 8 * k
    vR1F, vR1Y, vR2F, vR2Y = 224, 225, 226, 227
    vR = [[228, 229, 230], [231, 232, 233]]
    vA = [234, 235, 236]
    a(f"s_lshr_b32 s6, s{sW}, 1")
    a("s_and_b32 s6, s6, 1")
    a(f"s_and_b32 s7, s{sW}, 1")
    a(f"v_lshrrev_b32 {vr(T1)}, 5, {vr(vL)}")
    a(f"v_bfe_u32 {vr(T2)}, {vr(vL)}, 3, 1")
    a(f"v_and_b32 {vr(T3)}, 31, {vr(vL)}")
    a(f"v_lshl_add_u32 {vr(T0)}, {vr(T3)}, 1, {vr(T1)}")
    a(f"v_xor_b32 {vr(T0)}, {vr(T0)}, {vr(T2)}")
    a(f"s_lshl_b32 s8, s{sH}, 12")
    a("s_lshl_b32 s9, s6, 10")
    a("s_add_u32 s8, s8, s9")
    a(f"v_lshl_add_u32 {vr(vR1F)}, {vr(T0)}, 4, s8")
    a(f"s_lshl_b32 s8, s{sH}, 2")
    a(f"v_or_b32 {vr(T0)}, s8, {vr(T1)}")
    a(f"v_and_b32 {vr(T4)}, 6, {vr(vL)}")
    a(f"v_xor_b32 {vr(T0)}, {vr(T0)}, {vr(T4)}")
    a(f"v_xor_b32 {vr(T0)}, {vr(T0)}, {vr(T2)}")
    a(f"v_lshlrev_b32 {vr(T0)}, 4, {vr(T0)}")
    a(f"v_lshl_add_u32 {vr(T0)}, {vr(T3)}, 7, {vr(T0)}")
    a("s_lshl_b32 s9, s7, 12")
    a(f"v_add_u32 {vr(vR1Y)}, s9, {vr(T0)}")
    a(f"v_bfe_u32 {vr(T0)}, {vr(vL)}, 2, 2")
    a(f"v_lshl_add_u32 {vr(T1)}, {vr(T1)}, 3, {vr(T0)}")
    a(f"v_lshlrev_b32 {vr(T1)}, 7, {vr(T1)}")
    a(f"v_bfe_u32 {vr(T0)}, {vr(vL)}, 4, 1")
    a(f"v_lshlrev_b32 {vr(T0)}, 1, {vr(T0)}")
    a(f"v_bfe_u32 {vr(T3)}, {vr(vL)}, 1, 1")
    a(f"v_add_u32 {vr(T0)}, {vr(T0)}, {vr(T3)}")
    a(f"v_lshlrev_b32 {vr(T3)}, 2, {vr(T2)}")
    a(f"v_xor_b32 {vr(T2)}, {vr(T0)}, {vr(T3)}")
    a(f"v_and_b32 {vr(T3)}, 1, {vr(vL)}")
    a(f"v_lshl_add_u32 {vr(T1)}, {vr(T3)}, 3, {vr(T1)}")
    a(f"s_lshl_b32 s8, s{sH}, 12")
    a(f"s_add_u32 s8, s8, 8192")
    a(f"v_add_u32 {vr(T1)}, s8, {vr(T1)}")
    a("s_lshl_b32 s8, s7, 2")
    a("s_lshl_b32 s9, s6, 2")
    a(f"v_xor_b32 {vr(T3)}, s8, {vr(T2)}")
    a(f"v_lshl_add_u32 {vr(vR2F)}, {vr(T3)}, 4, {vr(T1)}")
    a(f"v_xor_b32 {vr(T3)}, s9, {vr(T2)}")
    a(f"v_lshl_add_u32 {vr(vR2Y)}, {vr(T3)}, 4, {vr(T1)}")
    def set_reads(hf, ty):
        if ty == "F":
            a(f"v_mov_b32 {vr(vR[hf][0])}, {vr(vR1F)}")
            a(f"v_add_u32 {vr(vR[hf][1])}, 0x800, {vr(vR1F)}")
            a(f"v_mov_b32 {vr(vR[hf][2])}, {vr(vR2F)}")
        else:
            a(f"v_mov_b32 {vr(vR[hf][0])}, {vr(vR1Y)}")
            a(f"v_xor_b32 {vr(vR[hf][1])}, 32, {vr(vR1Y)}")
            a(f"v_mov_b32 {vr(vR[hf][2])}, {vr(vR2Y)}")
    set_reads(0, "F"); set_reads(1, "F")
    for r in range(32): a(f"v_mov_b32 {vr(AF+r)}, 0")
    a(f"s_mov_b32 s{sIT}, 0")
    a(f"s_mov_b32 s{sSL}, 0")
    a(f"s_mov_b32 s{sTY}, 0")
    a(f"s_mul_i32 s{sP1s}, s{sC}, {112*4096}")
    a(f"s_lshl_b32 s6, s{sHH}, 11")
    a(f"s_add_u32 s{sP1s}, s{sP1s}, s6")
    a(f"s_mov_b32 s{sP1st}, 16384")
    Gr, Gi = 64, 65
    EB = 66; WB = 74; LJr, LJi = 82, 83
    vEo = 90
    a(f"v_mov_b32 {vr(Gr)}, 0")
    a(f"v_mov_b32 {vr(Gi)}, 0")
    a(f"v_lshlrev_b32 {vr(vEo)}, 12, {vr(vQ)}")
    a(f"v_lshl_add_u32 {vr(vEo)}, {vr(vI)}, 3, {vr(vEo)}")
    a(f"s_lshl_b32 s11, s{sG}, 8")
    a(f"s_lshl_b32 s6, s{sH}, 7")
    a("s_add_u32 s11, s11, s6")
    a(f"s_add_u32 s11, s11, {WS_E}")
    a("s_add_u32 s12, s11, 16384")
    a("s_add_u32 s13, s11, 32768")
    a("s_add_u32 s14, s11, 49152")
    def eloads():
        for m_ in range(4):
            a(f"buffer_load_dwordx2 {vr(EB+2*m_,2)}, {vr(vEo)}, s[{SWS}:{SWS+3}], s{11+m_} offen sc1")
    a(f"s_sub_u32 s6, s{sC}, 1")
    a(f"v_sub_u32 {vr(T4)}, s6, {vr(vQ)}")
    for m_ in range(4):
        a(f"v_add_u32 {vr(T5)}, {(-4*m_) & 0xffffffff}, {vr(T4)}")
        a(f"v_cmp_le_i32 vcc, 0, {vr(T5)}")
        a(f"v_max_i32 {vr(T5)}, 0, {vr(T5)}")
        a(f"v_lshlrev_b32 {vr(T5)}, 7, {vr(T5)}")
        a(f"v_cvt_f32_u32 {vr(T5)}, {vr(T5)}")
        cexp(a, WB+2*m_, WB+2*m_+1, vZR, vZI, vr(T5), T2, T3)
        a(f"v_cndmask_b32 {vr(WB+2*m_)}, 0, {vr(WB+2*m_)}, vcc")
        a(f"v_cndmask_b32 {vr(WB+2*m_+1)}, 0, {vr(WB+2*m_+1)}, vcc")
    a(f"v_lshlrev_b32 {vr(T5)}, 3, {vr(vQ)}")
    a(f"s_lshl_b32 s6, s{sRG}, 5")
    a(f"v_add_u32 {vr(T5)}, s6, {vr(T5)}")
    a(f"v_cvt_f32_u32 {vr(T5)}, {vr(T5)}")
    cexp(a, LJr, LJi, vZR, vZI, vr(T5), T2, T3)
    stamp(a)
    poll("H1", WS_F1)
    stamp(a)
    eloads()
    nnew = 8
    if "D" in TOUCH:
        nnew = 9
        a(f"s_mul_i32 s6, s{sW}, 28")
        a(f"v_min_u32 {vr(T0)}, 27, {vr(vL)}")
        a(f"v_add_u32 {vr(T0)}, s6, {vr(T0)}")
        a(f"v_lshrrev_b32 {vr(T1)}, 4, {vr(T0)}")
        a(f"v_and_b32 {vr(T0)}, 15, {vr(T0)}")
        a(f"v_lshlrev_b32 {vr(T0)}, 7, {vr(T0)}")
        a(f"v_lshl_add_u32 {vr(T0)}, {vr(T1)}, 12, {vr(T0)}")
        a(f"s_mul_i32 s6, s{sCT}, {14*4096}")
        a(f"s_add_u32 s6, s6, s{sP1s}")
    for s_ in range(8):
        a(f"s_add_u32 m0, s{sM1}, {s_*SLOT}")
        a(f"buffer_load_dwordx4 {vr(vP1)}, s[{SP1}:{SP1+3}], s{sP1s} offen sc1 lds")
        a(f"s_add_u32 s{sP1s}, s{sP1s}, s{sP1st}")
        if s_ == 1 and "D" in TOUCH:
            a(f"buffer_load_dword {vr(63)}, {vr(T0)}, s[{SWS}:{SWS+3}], s6 offen sc1")
    a("s_mov_b32 s15, 0")
    a(f"s_waitcnt vmcnt({nnew})")
    a("EPOLL:")
    a(f"v_mov_b32 {vr(T2)}, 1")
    for m_ in range(4):
        a(f"v_add_u32 {vr(T5)}, {(-4*m_) & 0xffffffff}, {vr(T4)}")
        a(f"v_lshrrev_b32 {vr(T5)}, 31, {vr(T5)}")
        a(f"v_or_b32 {vr(T5)}, {vr(T5)}, {vr(EB+2*m_)}")
        a(f"v_and_b32 {vr(T2)}, {vr(T2)}, {vr(T5)}")
    a(f"v_cmp_eq_u32 vcc, 0, {vr(T2)}")
    a("s_cmp_eq_u64 vcc, 0")
    a("s_cbranch_scc1 EPOLL_OK")
    a("s_add_u32 s15, s15, 1")
    a("s_cmp_gt_u32 s15, 0x8000")
    a("s_cbranch_scc1 EPOLL_OK")
    a("s_sleep 1")
    eloads()
    a("s_waitcnt vmcnt(0)")
    a("s_branch EPOLL")
    a("EPOLL_OK:")
    stamp(a)
    for m_ in range(4):
        cfma(a, Gr, Gi, WB+2*m_, WB+2*m_+1, EB+2*m_, EB+2*m_+1)
    red4(a, Gr, T2)
    red4(a, Gi, T3)
    cfma(a, vPr, vPi, LJr, LJi, Gr, Gi)
    CNr, CNi, HR, HI = 84, 85, 86, 88
    OR_, OI_ = 64, 68
    for t in range(8):
        a(f"v_mul_f32 {vr(CNr)}, {vr(vLr)}, {vr(vPr)}")
        a(f"v_mul_f32 {vr(CNi)}, {vr(vLr)}, {vr(vPi)}")
        a(f"v_fma_f32 {vr(CNr)}, -{vr(vLi)}, {vr(vPi)}, {vr(CNr)}")
        a(f"v_fmac_f32 {vr(CNi)}, {vr(vLi)}, {vr(vPr)}")
        a(f"v_mov_b32 {vr(vPr)}, {vr(CNr)}")
        a(f"v_mov_b32 {vr(vPi)}, {vr(CNi)}")
        a(f"v_add_f32 {vr(RE(t))}, {vr(RE(t))}, {vr(CNr)}")
        a(f"v_add_f32 {vr(IM(t))}, {vr(IM(t))}, {vr(CNi)}")
        h0, h1 = HR + (t & 1), HI + (t & 1)
        a(f"v_mul_f32 {vr(h0)}, {vr(vCr)}, {vr(RE(t))}")
        a(f"v_mul_f32 {vr(h1)}, -{vr(vCr)}, {vr(IM(t))}")
        a(f"v_fma_f32 {vr(h0)}, -{vr(vCi)}, {vr(IM(t))}, {vr(h0)}")
        a(f"v_fma_f32 {vr(h1)}, -{vr(vCi)}, {vr(RE(t))}, {vr(h1)}")
        if t & 1:
            a(f"v_cvt_pk_bf16_f32 {vr(OR_ + (t>>1))}, {vr(HR)}, {vr(HR+1)}")
            a(f"v_cvt_pk_bf16_f32 {vr(OI_ + (t>>1))}, {vr(HI)}, {vr(HI+1)}")
    a(f"v_lshlrev_b32 {vr(T0)}, 7, {vr(vI)}")
    a(f"v_lshl_add_u32 {vr(T0)}, {vr(vQ)}, 4, {vr(T0)}")
    a(f"s_lshl_b32 s6, s{sC}, 18")
    a(f"s_lshr_b32 s7, s{sRG}, 1")
    a("s_lshl_b32 s7, s7, 17")
    a("s_add_u32 s6, s6, s7")
    a(f"s_lshl_b32 s7, s{sG}, 12")
    a("s_add_u32 s6, s6, s7")
    a(f"s_lshl_b32 s7, s{sH}, 11")
    a("s_add_u32 s6, s6, s7")
    a(f"s_and_b32 s7, s{sRG}, 1")
    a("s_lshl_b32 s7, s7, 6")
    a("s_add_u32 s6, s6, s7")
    a(f"s_add_u32 s6, s6, {WS_HH}")
    a(f"s_add_u32 s7, s6, {512*128}")
    a(f"buffer_store_dwordx4 {vr(OR_,4)}, {vr(T0)}, s[{SWS}:{SWS+3}], s6 offen sc1")
    a(f"buffer_store_dwordx4 {vr(OI_,4)}, {vr(T0)}, s[{SWS}:{SWS+3}], s7 offen sc1")
    stamp(a)
    def rd_list(st, A):
        o = []
        for k in range(4):
            off = 16384 * (k >> 1)
            o.append(f"ds_read_b128 {vr(F1(st,k),4)}, {vr(A[k&1])} offset:{off}")
            o.append(f"ds_read_b64_tr_b16 {vr(F2(st,k),2)}, {vr(A[2])} offset:{off + 2048*(k&1)}")
            o.append(f"ds_read_b64_tr_b16 {vr(F2(st,k)+2,2)}, {vr(A[2])} offset:{off + 2048*(k&1) + 512}")
        return o
    a("s_waitcnt vmcnt(8)")
    a("s_barrier")
    stamp(a)
    for s in rd_list(0, vR[0]): a(s)
    cur_it = [0]
    def run(stop):
        ty = "F" if cur_it[0] < 14 else "Y"
        a(f"s_mov_b32 s{sSTOP}, {stop}")
        call(f"P{ty}{cur_it[0] & 1}")
        cur_it[0] = stop
    a("s_waitcnt vmcnt(6)")
    run(1)
    run(EV_HHF)
    a(f"s_cmp_lg_u32 s{sW}, 0")
    a("s_cbranch_scc1 NOFLAG2")
    setflag(WS_F2)
    a("NOFLAG2:")
    run(EV_HHP)
    stamp(a)
    poll("HH", WS_F2)
    stamp(a)
    if "E" in TOUCH:
        a(f"s_lshl_b32 s6, s{sCT}, 7")
        a(f"s_lshl_b32 s7, s{sW}, 4")
        a("s_add_u32 s6, s6, s7")
        a(f"v_add_u32 {vr(T0)}, s6, {vr(vI)}")
        a(f"v_lshlrev_b32 {vr(T0)}, 7, {vr(T0)}")
        a(f"s_lshl_b32 s6, s{sC}, 18")
        a(f"s_lshl_b32 s7, s{sHH}, 17")
        a("s_add_u32 s6, s6, s7")
        a(f"s_add_u32 s6, s6, {WS_HH}")
        a(f"buffer_load_dword {vr(63)}, {vr(T0)}, s[{SWS}:{SWS+3}], s6 offen sc1")
    if EV_HHP < 10: run(10)
    srd(a, SP1, 26, 27, 524288)
    for k in range(4): a(f"s_mov_b32 s{SP2+k}, s{SWS+k}")
    a(f"v_mov_b32 {vr(vP1)}, {vr(vP1Y)}")
    a(f"v_mov_b32 {vr(vP2)}, {vr(vP2Y)}")
    a(f"s_lshl_b32 s{sP1s}, s{sCT}, 16")
    a(f"s_mov_b32 s{sP1st}, 128")
    a(f"s_lshl_b32 s6, s{sC}, 18")
    a(f"s_lshl_b32 s7, s{sHH}, 17")
    a("s_add_u32 s6, s6, s7")
    a(f"s_add_u32 s{sP2s}, s6, {WS_HH}")
    a(f"s_mov_b32 s{sP2st}, 8192")
    run(13)
    set_reads(1, "Y")
    run(14)
    stamp(a)
    set_reads(0, "Y")
    srd(a, SP1, 28, 29, 524288)
    a(f"s_lshl_b32 s{sP1s}, s{sCT}, 16")
    XV = 240; vXo, vOo, vDk, vSo = 237, 238, 239, 19
    srd(a, SO, 40, 41, 4194304)
    a(f"s_lshr_b32 s6, s{sW}, 1")
    a("s_and_b32 s6, s6, 1")
    a("s_lshl_b32 s6, s6, 5")
    a(f"s_lshl_b32 s7, s{sH}, 4")
    a("s_add_u32 s6, s6, s7")
    a(f"s_lshl_b32 s7, s{sHH}, 6")
    a("s_add_u32 s6, s6, s7")
    a(f"v_lshrrev_b32 {vr(T1)}, 5, {vr(vL)}")
    a(f"v_lshl_add_u32 {vr(T1)}, {vr(T1)}, 2, s6")
    a(f"v_lshlrev_b32 {vr(vSo)}, 2, {vr(T1)}")
    a(f"v_add_u32 {vr(vSo)}, {SCR}, {vr(vSo)}")
    a(f"s_lshl_b32 s7, s{sC}, 7")
    a(f"v_add_u32 {vr(T1)}, s7, {vr(T1)}")
    a(f"s_and_b32 s7, s{sW}, 1")
    a("s_lshl_b32 s7, s7, 5")
    a(f"s_lshl_b32 s8, s{sCT}, 6")
    a("s_add_u32 s7, s7, s8")
    a(f"v_and_b32 {vr(T0)}, 31, {vr(vL)}")
    a(f"v_add_u32 {vr(T0)}, s7, {vr(T0)}")
    a(f"v_lshl_add_u32 {vr(T1)}, {vr(T1)}, 9, {vr(T0)}")
    a(f"v_lshlrev_b32 {vr(vXo)}, 1, {vr(T1)}")
    a(f"v_lshlrev_b32 {vr(vOo)}, 2, {vr(T1)}")
    a(f"v_lshlrev_b32 {vr(T0)}, 1, {vr(T0)}")
    a(f"global_load_ushort {vr(vDk)}, {vr(T0)}, s[32:33]")
    for ii in range(8):
        ro = 8 * (ii >> 2) + (ii & 3)
        if ro * 1024 < 4096:
            a(f"buffer_load_ushort {vr(XV+ii)}, {vr(vXo)}, s[{SX}:{SX+3}], 0 offen offset:{ro*1024}")
        else:
            a(f"s_mov_b32 s9, {ro*1024}")
            a(f"buffer_load_ushort {vr(XV+ii)}, {vr(vXo)}, s[{SX}:{SX+3}], s9 offen")
    run(18)
    a(f"s_mov_b32 s{SP1+2}, 0")
    a(f"s_mov_b32 s{SP2+2}, 0")
    run(22)
    stamp(a)
    a("s_waitcnt vmcnt(0) lgkmcnt(0)")
    a("s_barrier")
    a(f"s_lshl_b32 s6, s{sW}, 12")
    a(f"v_lshl_add_u32 {vr(T0)}, {vr(vL)}, 4, s6")
    a(f"s_xor_b32 s7, s{sW}, 4")
    a("s_lshl_b32 s7, s7, 12")
    a(f"v_lshl_add_u32 {vr(T1)}, {vr(vL)}, 4, s7")
    a.flush()
    a(f"s_cmp_eq_u32 s{sH}, 1")
    a("s_cbranch_scc1 RED_H1")
    for k, r in enumerate((AF+8, AF+12, AY+8, AY+12)):
        a(f"ds_write_b128 {vr(T0)}, {vr(r,4)} offset:{1024*k}")
    a("s_branch RED_X")
    a("RED_H1:")
    for k, r in enumerate((AF, AF+4, AY, AY+4)):
        a(f"ds_write_b128 {vr(T0)}, {vr(r,4)} offset:{1024*k}")
    for k in range(8):
        a(f"v_mov_b32 {vr(AF+k)}, {vr(AF+8+k)}")
        a(f"v_mov_b32 {vr(AY+k)}, {vr(AY+8+k)}")
    a("RED_X:")
    a("s_waitcnt lgkmcnt(0)")
    a("s_barrier")
    RB = 160
    for k in range(4):
        a(f"ds_read_b128 {vr(RB+4*k,4)}, {vr(T1)} offset:{1024*k}")
    STt = 176
    a(f"ds_read_b128 {vr(STt,4)}, {vr(vSo)}")
    a(f"ds_read_b128 {vr(STt+4,4)}, {vr(vSo)} offset:32")
    a(f"ds_read_b128 {vr(STt+8,4)}, {vr(vSo)} offset:512")
    a(f"ds_read_b128 {vr(STt+12,4)}, {vr(vSo)} offset:544")
    a("s_waitcnt lgkmcnt(4)")
    for k in range(8):
        a(f"v_add_f32 {vr(AF+k)}, {vr(AF+k)}, {vr(RB+k)}")
        a(f"v_add_f32 {vr(AY+k)}, {vr(AY+k)}, {vr(RB+8+k)}")
    Fv = list(range(AF, AF+8)); Tm = list(range(64, 72))
    for s in silu_ops(Fv, Tm): a(s)
    for v in Fv: a(f"v_cvt_pk_bf16_f32 {vr(v)}, 0, {vr(v)}")
    a("s_waitcnt vmcnt(0) lgkmcnt(0)")
    a(f"v_lshlrev_b32 {vr(vDk)}, 16, {vr(vDk)}")
    for ii in range(8):
        x = XV + ii; t = 64 + ii; nm = STt + 8 + ii; rs = STt + ii
        a(f"v_lshlrev_b32 {vr(x)}, 16, {vr(x)}")
        a(f"v_add_f32 {vr(t)}, {vr(x)}, {vr(nm)}")
        a(f"v_cvt_pk_bf16_f32 {vr(t)}, 0, {vr(t)}")
        a(f"v_mul_f32 {vr(t)}, {vr(t)}, {vr(rs)}")
        a(f"v_cvt_pk_bf16_f32 {vr(t)}, 0, {vr(t)}")
        a(f"v_mul_f32 {vr(t)}, {vr(t)}, {vr(vDk)}")
        a(f"v_cvt_pk_bf16_f32 {vr(t)}, 0, {vr(t)}")
        a(f"v_fma_f32 {vr(t)}, 2.0, {vr(AY+ii)}, {vr(t)}")
        a(f"v_mul_f32 {vr(t)}, {vr(t)}, {vr(AF+ii)}")
        a(f"v_add_f32 {vr(t)}, {vr(t)}, {vr(x)}")
        ro = 8 * (ii >> 2) + (ii & 3)
        if ro * 2048 < 4096:
            a(f"buffer_store_dword {vr(t)}, {vr(vOo)}, s[{SO}:{SO+3}], 0 offen offset:{ro*2048}")
        else:
            a(f"s_mov_b32 s9, {ro*2048}")
            a(f"buffer_store_dword {vr(t)}, {vr(vOo)}, s[{SO}:{SO+3}], s9 offen")
    stamp(a)
    if STAMPS:
        a("s_waitcnt vmcnt(0)")
        stamp(a)
        a(f"s_lshl_b32 s6, s2, 3")
        a(f"s_add_u32 s6, s6, s{sW}")
        a("s_lshl_b32 s6, s6, 8")
        a(f"s_add_u32 s6, s6, {WS_ST}")
        a(f"v_lshlrev_b32 {vr(T0)}, 2, {vr(vL)}")
        a(f"buffer_store_dword {vr(VST)}, {vr(T0)}, s[{SWS}:{SWS+3}], s6 offen")
        a(f"s_add_u32 s6, s6, 0x80000")
        a(f"buffer_store_dword {vr(248)}, {vr(T0)}, s[{SWS}:{SWS+3}], s6 offen")
    a("K_END:")
    a("s_endpgm")

    def rawlabel(n):
        a.hist = []
        a.lines.append(n + ":")
    for ty in "FY":
        for hf in range(2):
            cur, nxt = hf, 1 - hf
            rawlabel(f"P{ty}{hf}")
            a(f"s_mov_b32 s6, s{sSL}")
            a(f"s_add_u32 s{sSL}, s{sSL}, {2*SLOT}")
            a(f"s_and_b32 s{sSL}, s{sSL}, {SLOT*NSLOT-1}")
            for k in range(3):
                a(f"v_add_u32 {vr(vA[k])}, s{sSL}, {vr(vR[hf][k])}")
            a(f"s_add_u32 s7, s{sM1}, s6")
            a(f"s_add_u32 s{sIT}, s{sIT}, 1")
            a("s_waitcnt vmcnt(8) lgkmcnt(0)")
            a("s_barrier")
            if STAMPS:
                a("s_memtime s[98:99]")
                a("s_waitcnt lgkmcnt(0)")
                a(f"s_mov_b32 m0, s{sIT}")
                a("s_nop 0")
                a(f"v_writelane_b32 {vr(248)}, s98, m0")
            rl = rd_list(nxt, vA)
            for k in range(4):
                if ty == "F":
                    a(f"v_mfma_f32_32x32x16_bf16 {vr(AF,16)}, {vr(F1(cur,k),4)}, {vr(F2(cur,k),4)}, {vr(AF,16)}")
                else:
                    a(f"v_mfma_f32_32x32x16_bf16 {vr(AY,16)}, {vr(F2(cur,k),4)}, {vr(F1(cur,k),4)}, {vr(AY,16)}")
                for s in rl[3*k:3*k+3]: a(s)
                if k & 1 == 0:
                    a(f"s_add_u32 m0, s7, {8192 + 16384*(k>>1)}")
                    a(f"buffer_load_dwordx4 {vr(vP2)}, s[{SP2}:{SP2+3}], s{sP2s} offen sc1 lds")
                    a(f"s_add_u32 s{sP2s}, s{sP2s}, s{sP2st}")
                else:
                    a(f"s_add_u32 m0, s7, {16384*(k>>1)}")
                    a(f"buffer_load_dwordx4 {vr(vP1)}, s[{SP1}:{SP1+3}], s{sP1s} offen sc1 lds")
                    a(f"s_add_u32 s{sP1s}, s{sP1s}, s{sP1st}")
            a(f"s_cmp_lt_u32 s{sIT}, s{sSTOP}")
            if hf == 0:
                a(f"s_cbranch_scc0 PRET")
            else:
                a(f"s_cbranch_scc1 P{ty}0")
                if ty == "F": a("s_branch PRET")
    rawlabel("PRET")
    a("s_nop 7")
    a("s_nop 7")
    a(f"s_setpc_b64 s[{sRET}:{sRET+1}]")
    a("CODE_END:")
    return a

def gen_pre():
    a = Asm()
    a("s_cmp_ge_u32 s2, 17")
    a("s_cbranch_scc1 PRE_END")
    a("s_load_dwordx2 s[4:5], s[0:1], 112")
    a("v_lshlrev_b32 v1, 4, v0")
    a("s_lshl_b32 s6, s2, 12")
    a(f"s_add_u32 s6, s6, {WS_E}")
    for k in range(4): a(f"v_mov_b32 v{2+k}, 0")
    a("s_waitcnt lgkmcnt(0)")
    srd(a, 8, 4, 5, WS_SIZE)
    a("buffer_store_dwordx4 v[2:5], v1, s[8:11], s6 offen")
    a("PRE_END:")
    a("s_endpgm")
    return a

def kd(name, vgpr, accum, sgpr=102):
    return f""".section .rodata,"a"
.p2align 6
.amdhsa_kernel {name}
  .amdhsa_next_free_vgpr {vgpr}
  .amdhsa_next_free_sgpr {sgpr}
  .amdhsa_accum_offset {accum}
  .amdhsa_group_segment_fixed_size 0
  .amdhsa_kernarg_size 120
  .amdhsa_user_sgpr_count 2
  .amdhsa_user_sgpr_kernarg_segment_ptr 1
  .amdhsa_system_sgpr_workgroup_id_x 1
.end_amdhsa_kernel
"""

def main(out):
    ref = open("cdna_kernels/" + NAME + ".s.ref").read().split("\n")
    hdr = [l for l in ref if l.startswith(";") and "@launch" not in l and "Override" not in l and "grid=ceil" not in l]
    k = gen()
    kn = "main_kernel"
    s = "\n".join(hdr) + "\n"
    s += "; @launch kernel=pre_kernel grid=(17,1,1) block=(256,1,1) lds=0\n"
    s += "; @launch kernel=main_kernel grid=(256,1,1) block=(512,1,1) lds=163840\n"
    s += '.amdgcn_target "amdgcn-amd-amdhsa--gfx950"\n.text\n'
    s += f".globl pre_kernel\n.p2align 8\n.type pre_kernel,@function\npre_kernel:\n" + gen_pre().text()
    s += f".globl {kn}\n.p2align 8\n.type {kn},@function\n{kn}:\n"
    s += k.text()
    s += kd("pre_kernel", 16, 16, 32) + kd(kn, 256, 256)
    open(out, "w").write(s)
    print("instrs", k.count, "bytes", len(s), "stamps", _nst[0])

if __name__ == "__main__":
    if "--stamps" in sys.argv:
        STAMPS = True; sys.argv.remove("--stamps")
    main(sys.argv[1] if len(sys.argv) > 1 else "g1.s")
```

```python
import sys, struct, os
from asmlib import Asm

NAME = "recurrent_scan__ssm_conv_s5__dense_activation_silu__prompt"
WS_H1 = 0
WS_HH = 0x800000
WS_E = 0xD00000
WS_F1 = 0xD10000
WS_F2 = 0xD10800
WS_ST = 0xE00000
WS_SIZE = 0xF00000
LOG2E = 0x3fb8aa3b
INV2PI = "0.15915494309189535"
SLOT = 16384
NSLOT = 8
R2 = 131072
SCR = R2
EV_HHP = int(os.environ.get("EV_HHP", 7))
EV_HHF = int(os.environ.get("EV_HHF", 4))
TOUCH = os.environ.get("TOUCH", "BCDE")

def vr(b, n=1):
    return f"v{b}" if n == 1 else f"v[{b}:{b+n-1}]"
def flit(x):
    return hex(struct.unpack('<I', struct.pack('<f', float(x)))[0])

STAMPS = False
VST = 30
_nst = [0]
def stamp(a, tag=None):
    if not STAMPS: return
    a.flush()
    a("s_memtime s[98:99]")
    a("s_waitcnt lgkmcnt(0)")
    a(f"v_writelane_b32 {vr(VST)}, s98, {_nst[0]}")
    _nst[0] += 1

class Rec:
    def __init__(self): self.l = []
    def __call__(self, s): self.l.append(s)

def set_exec(a, m):
    a(f"s_mov_b32 exec_lo, {hex(m & 0xffffffff)}")
    a(f"s_mov_b32 exec_hi, {hex((m >> 32) & 0xffffffff)}")

def srd(a, s, lo, hi, size):
    a(f"s_mov_b32 s{s}, s{lo}")
    a(f"s_mov_b32 s{s+1}, s{hi}")
    a(f"s_mov_b32 s{s+2}, {size}")
    a(f"s_mov_b32 s{s+3}, 0x20000")

def cexp(a, dr, di, zr2, zi2, n, t0, t1):
    if isinstance(n, str):
        a(f"v_mul_f32 {vr(t0)}, {n}, {vr(zr2)}")
        a(f"v_mul_f32 {vr(t1)}, {n}, {vr(zi2)}")
    elif n == 1:
        a(f"v_mov_b32 {vr(t0)}, {vr(zr2)}")
        a(f"v_mov_b32 {vr(t1)}, {vr(zi2)}")
    else:
        a(f"v_mul_f32 {vr(t0)}, {flit(n)}, {vr(zr2)}")
        a(f"v_mul_f32 {vr(t1)}, {flit(n)}, {vr(zi2)}")
    a(f"v_exp_f32 {vr(t0)}, {vr(t0)}")
    a(f"v_fract_f32 {vr(t1)}, {vr(t1)}")
    a(f"v_cos_f32 {vr(dr)}, {vr(t1)}")
    a(f"v_sin_f32 {vr(di)}, {vr(t1)}")
    a(f"v_mul_f32 {vr(dr)}, {vr(dr)}, {vr(t0)}")
    a(f"v_mul_f32 {vr(di)}, {vr(di)}, {vr(t0)}")

def red4(a, v, t):
    a(f"v_mov_b32 {vr(t)}, {vr(v)}")
    a(f"v_permlane16_swap_b32 {vr(v)}, {vr(t)}")
    a(f"v_add_f32 {vr(v)}, {vr(v)}, {vr(t)}")
    a(f"v_mov_b32 {vr(t)}, {vr(v)}")
    a(f"v_permlane32_swap_b32 {vr(v)}, {vr(t)}")
    a(f"v_add_f32 {vr(v)}, {vr(v)}, {vr(t)}")

def cfma(a, sr_, si_, lr, li, pr, pi):
    a(f"v_fmac_f32 {vr(sr_)}, {vr(lr)}, {vr(pr)}")
    a(f"v_fmac_f32 {vr(si_)}, {vr(lr)}, {vr(pi)}")
    a(f"v_fma_f32 {vr(sr_)}, -{vr(li)}, {vr(pi)}, {vr(sr_)}")
    a(f"v_fmac_f32 {vr(si_)}, {vr(li)}, {vr(pr)}")

def silu_ops(vals, tmp):
    o = []
    for v in vals: o.append(f"v_cvt_pk_bf16_f32 {vr(v)}, 0, {vr(v)}")
    for v, t in zip(vals, tmp): o.append(f"v_mul_f32 {vr(t)}, 0xbfb8aa3b, {vr(v)}")
    for v, t in zip(vals, tmp): o.append(f"v_exp_f32 {vr(t)}, {vr(t)}")
    for v, t in zip(vals, tmp): o.append(f"v_add_f32 {vr(t)}, 1.0, {vr(t)}")
    for v, t in zip(vals, tmp): o.append(f"v_rcp_f32 {vr(t)}, {vr(t)}")
    for v, t in zip(vals, tmp): o.append(f"v_mul_f32 {vr(v)}, {vr(v)}, {vr(t)}")
    return o

def merge(a, main, fill):
    nm = sum(1 for m in main if m.startswith("v_mfma"))
    fi = 0; seen = 0
    def put(x):
        if isinstance(x, (tuple, list)):
            for y in x: a(y)
        else: a(x)
    for m in main:
        a(m)
        if m.startswith("v_mfma"):
            seen += 1
            tgt = (len(fill) * seen) // nm
            while fi < tgt:
                put(fill[fi]); fi += 1
    while fi < len(fill):
        put(fill[fi]); fi += 1

def gen():
    a = Asm()
    XA = lambda fa, kb: 128 + (fa * 16 + kb) * 4
    FB = lambda n: 64 + 4 * (n & 7)
    ACC = [96, 100]
    EV = list(range(104, 112)); ET = list(range(112, 120))
    PK = 120
    CSF = 124
    SA = lambda ri, fa: 32 + ri * 8 + fa * 4
    vL, vI, vQ = 1, 2, 3
    T0, T1, T2, T3, T4, T5 = 4, 5, 6, 7, 8, 9
    vXB = [10, 11, 12, 13]
    vTC = [14, 15]
    vCSa = 16
    vTN = 17
    vFP, vFF, vD0, vD, vW1, vXD = 18, 19, 20, 21, 22, 23
    vNM = [24, 25]; vRS = [26, 27]
    vCS = [28, 31]
    vH1 = 29
    vZR, vZI, vLr, vLi, vCr, vCi = 48, 49, 50, 51, 52, 53
    vPr, vPi = 54, 55
    vONE = 56
    vPm = [60, 61, 62]
    sW, sC, sG = 3, 4, 5
    SX, SW1, SBD, SWS, SP1, SP2, SO = 48, 52, 56, 60, 64, 68, 72
    sRG, sH, sHH, sCT = 76, 77, 78, 79
    sWM = 88
    sRET = 96
    a("s_cmp_ge_u32 s2, 256")
    a("s_cbranch_scc1 K_END")
    a("s_load_dwordx16 s[16:31], s[0:1], 0")
    a("s_load_dwordx2 s[32:33], s[0:1], 64")
    a("s_load_dwordx8 s[36:43], s[0:1], 80")
    a("s_load_dwordx2 s[34:35], s[0:1], 112")
    a("s_getpc_b64 s[44:45]")
    a(f"v_lshlrev_b32 {vr(T0)}, 7, v0")
    a(f"v_min_u32 {vr(T0)}, CODE_END-main_kernel-64, {vr(T0)}")
    a(f"global_load_dword {vr(63)}, {vr(T0)}, s[44:45]")
    if STAMPS: a(f"v_mov_b32 {vr(VST)}, 0")
    stamp(a)
    a(f"v_lshrrev_b32 {vr(T0)}, 6, v0")
    a(f"v_readfirstlane_b32 s{sW}, {vr(T0)}")
    a(f"v_and_b32 {vr(vL)}, 63, v0")
    a(f"v_and_b32 {vr(vI)}, 15, v0")
    a(f"v_lshrrev_b32 {vr(vQ)}, 4, {vr(vL)}")
    a("s_and_b32 s6, s2, 6")
    a("s_lshl_b32 s6, s6, 1")
    a("s_lshr_b32 s7, s2, 3")
    a("s_and_b32 s7, s7, 3")
    a(f"s_add_u32 s{sC}, s6, s7")
    a(f"s_and_b32 s{sHH}, s2, 1")
    a(f"s_lshr_b32 s{sCT}, s2, 5")
    a(f"s_lshl_b32 s6, s{sHH}, 3")
    a(f"s_add_u32 s{sG}, s6, s{sCT}")
    a(f"s_and_b32 s{sRG}, s{sW}, 3")
    a(f"s_lshr_b32 s{sH}, s{sW}, 2")
    a(f"s_and_b32 s6, s{sW}, 1")
    a("s_lshl_b32 s6, s6, 3")
    a(f"v_xor_b32 {vr(vXD)}, s6, {vr(vL)}")
    a(f"v_lshlrev_b32 {vr(vXD)}, 4, {vr(vXD)}")
    a(f"s_lshl_b32 s8, s{sC}, 7")
    a(f"s_lshl_b32 s7, s{sW}, 4")
    a("s_add_u32 s8, s8, s7")
    a("s_lshl_b32 s8, s8, 10")
    a(f"s_lshl_b32 s9, s{sW}, 13")
    a(f"s_lshl_b32 s6, s{sRG}, 2")
    a(f"v_xor_b32 {vr(vD0)}, s6, {vr(vL)}")
    a(f"v_lshlrev_b32 {vr(vD0)}, 4, {vr(vD0)}")
    a(f"s_lshl_b32 s13, s{sG}, 5")
    a(f"s_lshl_b32 s6, s{sW}, 2")
    a("s_add_u32 s13, s13, s6")
    a("s_lshl_b32 s13, s13, 10")
    a(f"s_lshl_b32 s14, s{sW}, 12")
    a("s_waitcnt lgkmcnt(0)")
    srd(a, SX, 16, 17, 2097152)
    srd(a, SWS, 34, 35, WS_SIZE)
    a(f"s_cmp_lg_u32 s{sW}, 0")
    a("s_cbranch_scc1 NOZERO")
    a(f"s_lshl_b32 s6, s{sC}, 12")
    a(f"s_lshl_b32 s7, s{sG}, 8")
    a("s_add_u32 s6, s6, s7")
    a(f"s_add_u32 s6, s6, {WS_E}")
    a(f"v_lshlrev_b32 {vr(T1)}, 2, {vr(vL)}")
    a(f"v_mov_b32 {vr(T2)}, 0")
    a(f"buffer_store_dword {vr(T2)}, {vr(T1)}, s[{SWS}:{SWS+3}], s6 offen sc1")
    a(f"s_lshl_b32 s6, s{sC}, 7")
    a(f"s_lshl_b32 s7, s{sG}, 2")
    a("s_add_u32 s6, s6, s7")
    a(f"s_add_u32 s6, s6, {WS_F1}")
    a(f"v_lshlrev_b32 {vr(T1)}, 11, {vr(vL)}")
    a("s_mov_b64 exec, 3")
    a(f"buffer_store_dword {vr(T2)}, {vr(T1)}, s[{SWS}:{SWS+3}], s6 offen sc1")
    a("s_mov_b64 exec, -1")
    a("NOZERO:")
    for fa in range(2):
        for n in range(8):
            a(f"v_xor_b32 {vr(vD)}, {n<<4}, {vr(vXD)}")
            a(f"s_add_u32 m0, s9, {fa*65536 + n*1024}")
            a(f"s_add_u32 s10, s8, {(8*(n>>2) + (n&3) + 4*fa)*1024}")
            a(f"buffer_load_dwordx4 {vr(vD)}, s[{SX}:{SX+3}], s10 offen lds")
    srd(a, SBD, 22, 23, 524288)
    def bdma(n):
        return (f"v_xor_b32 {vr(vD)}, {n<<4}, {vr(vD0)}",
                f"s_add_u32 m0, s14, {R2 + 1024*n}",
                f"s_add_u32 s10, s13, {1024*n}",
                f"buffer_load_dwordx4 {vr(vD)}, s[{SBD}:{SBD+3}], s10 offen lds")
    for n in range(4):
        for s in bdma(n): a(s)
    srd(a, SW1, 36, 37, 1835008)
    a(f"s_lshl_b32 s6, s{sG}, 6")
    a(f"s_lshl_b32 s7, s{sH}, 5")
    a("s_add_u32 s6, s6, s7")
    a(f"v_lshl_add_u32 {vr(T1)}, {vr(vI)}, 1, s6")
    a(f"global_load_ushort {vr(vPm[0])}, {vr(T1)}, s[18:19]")
    a(f"global_load_ushort {vr(vPm[1])}, {vr(T1)}, s[20:21]")
    a(f"global_load_ushort {vr(vPm[2])}, {vr(T1)}, s[30:31]")
    sJ = 100
    a(f"s_lshr_b32 s{sJ}, s2, 3")
    if "A" in TOUCH:
        a(f"s_cmp_ge_u32 s{sW}, 4")
        a("s_cbranch_scc1 TA_B")
        a(f"s_lshl_b32 s6, s{sJ}, 4")
        a(f"s_lshl_b32 s7, s{sW}, 2")
        a("s_add_u32 s6, s6, s7")
        a(f"v_add_u32 {vr(T0)}, s6, {vr(vQ)}")
        a("s_movk_i32 s6, 3584")
        a(f"v_mul_lo_u32 {vr(T0)}, {vr(T0)}, s6")
        a(f"v_min_u32 {vr(T1)}, 13, {vr(vI)}")
        a(f"v_lshl_add_u32 {vr(T0)}, {vr(T1)}, 7, {vr(T0)}")
        a(f"s_mul_i32 s6, s{sHH}, 1792")
        a(f"buffer_load_dword {vr(63)}, {vr(T0)}, s[{SW1}:{SW1+3}], s6 offen")
        a("s_branch TA_X")
        a("TA_B:")
        a(f"s_lshl_b32 s6, s{sJ}, 6")
        a(f"s_lshl_b32 s7, s{sRG}, 4")
        a("s_add_u32 s6, s6, s7")
        a(f"s_lshl_b32 s7, s{sHH}, 11")
        a("s_add_u32 s6, s6, s7")
        a(f"v_add_u32 {vr(T0)}, s6, {vr(vI)}")
        a(f"v_lshlrev_b32 {vr(T0)}, 7, {vr(T0)}")
        a(f"global_load_dword {vr(63)}, {vr(T0)}, s[24:25]")
        a("TA_X:")
    a(f"s_lshr_b32 s6, s{sW}, 1")
    a("s_and_b32 s6, s6, 1")
    a("s_lshl_b32 s6, s6, 2")
    a(f"v_or_b32 {vr(T0)}, s6, {vr(vQ)}")
    a(f"v_lshrrev_b32 {vr(T1)}, 1, {vr(vI)}")
    a(f"v_xor_b32 {vr(T0)}, {vr(T0)}, {vr(T1)}")
    a(f"v_cmp_ne_u32 s[{sWM}:{sWM+1}], 7, {vr(T0)}")
    a(f"v_lshlrev_b32 {vr(T0)}, 5, {vr(T0)}")
    a(f"v_and_b32 {vr(T1)}, 1, {vr(vI)}")
    a(f"v_lshl_add_u32 {vr(T0)}, {vr(T1)}, 4, {vr(T0)}")
    a("s_movk_i32 s6, 3584")
    a(f"v_mul_lo_u32 {vr(T1)}, {vr(vQ)}, s6")
    a(f"v_add_u32 {vr(T0)}, {vr(T0)}, {vr(T1)}")
    a(f"s_mul_i32 s6, s{sG}, 224")
    a(f"v_add_u32 {vr(vW1)}, s6, {vr(T0)}")
    a(f"s_mul_i32 s11, s{sW}, 14336")
    a(f"s_lshl_b32 s12, s{sW}, 10")
    def w1dma(n):
        return (f"s_add_u32 m0, s12, {8192*n}",
                f"s_add_u32 s10, s11, {8*14336*n}",
                f"s_mov_b64 exec, s[{sWM}:{sWM+1}]",
                f"buffer_load_dwordx4 {vr(vW1)}, s[{SW1}:{SW1+3}], s10 offen lds",
                "s_mov_b64 exec, -1")
    a(f"s_lshl_b32 s6, s{sRG}, 4")
    a(f"v_add_u32 {vr(T0)}, s6, {vr(vI)}")
    a(f"v_lshlrev_b32 {vr(T0)}, 10, {vr(T0)}")
    for j in range(4):
        a(f"v_or_b32 {vr(T1)}, {4*j}, {vr(vQ)}")
        a(f"v_xor_b32 {vr(T1)}, {vr(T1)}, {vr(vI)}")
        a(f"v_lshl_add_u32 {vr(vXB[j])}, {vr(T1)}, 4, {vr(T0)}")
    for k in range(4): a(f"v_mov_b32 {vr(vONE+k)}, 0x3f803f80")
    a(f"v_bfe_u32 {vr(T0)}, {vr(vL)}, 2, 2")
    a(f"v_lshl_add_u32 {vr(T1)}, {vr(vQ)}, 3, {vr(T0)}")
    a(f"v_lshlrev_b32 {vr(T1)}, 8, {vr(T1)}")
    a(f"v_and_b32 {vr(T2)}, 3, {vr(vL)}")
    a(f"v_lshl_add_u32 {vr(vFP)}, {vr(T2)}, 3, {vr(T1)}")
    a(f"v_and_b32 {vr(T2)}, 1, {vr(vQ)}")
    a(f"v_lshl_add_u32 {vr(T0)}, {vr(T2)}, 2, {vr(T0)}")
    a(f"v_lshlrev_b32 {vr(vFF)}, 5, {vr(T0)}")
    a(f"v_lshrrev_b32 {vr(T0)}, 2, {vr(vI)}")
    a(f"v_lshlrev_b32 {vr(T0)}, 3, {vr(T0)}")
    a(f"v_and_b32 {vr(T1)}, 3, {vr(vI)}")
    a(f"v_add_u32 {vr(T0)}, {vr(T0)}, {vr(T1)}")
    a(f"v_lshl_add_u32 {vr(T0)}, {vr(T2)}, 2, {vr(T0)}")
    a(f"v_lshlrev_b32 {vr(T0)}, 5, {vr(T0)}")
    a(f"v_lshrrev_b32 {vr(T3)}, 1, {vr(vQ)}")
    a(f"v_lshl_add_u32 {vr(vH1)}, {vr(T3)}, 4, {vr(T0)}")
    a(f"v_lshlrev_b32 {vr(T3)}, 12, {vr(T3)}")
    a(f"v_lshl_add_u32 {vr(T3)}, {vr(T2)}, 4, {vr(T3)}")
    a(f"v_add_u32 {vr(vCSa)}, 224, {vr(T3)}")
    a(f"v_cmp_eq_u32 s[90:91], 1, {vr(T1)}")
    a(f"v_cmp_eq_u32 s[92:93], 2, {vr(T1)}")
    a(f"v_cmp_eq_u32 s[94:95], 3, {vr(T1)}")
    a(f"v_lshrrev_b32 {vr(T1)}, 2, {vr(vI)}")
    a(f"v_cmp_eq_u32 s[46:47], {vr(T1)}, {vr(vQ)}")
    stamp(a)

    def process_fa(fa, fill):
        AS, AQ = 96, 100
        m = []
        for kb in range(16):
            c = "0" if kb == 0 else vr(AS, 4)
            m.append(f"v_mfma_f32_16x16x32_bf16 {vr(AS,4)}, {vr(vONE,4)}, {vr(XA(fa,kb),4)}, {c}")
        for kb in range(16):
            c = "0" if kb == 0 else vr(AQ, 4)
            m.append(f"v_mfma_f32_16x16x32_bf16 {vr(AQ,4)}, {vr(XA(fa,kb),4)}, {vr(XA(fa,kb),4)}, {c}")
            if kb == 3:
                m.append(f"v_mul_f32 {vr(T4)}, 0xbb000000, {vr(AS)}")
                m.append(f"v_cvt_pk_bf16_f32 {vr(vNM[fa])}, 0, {vr(T4)}")
        merge(a, m, fill)
        a(f"v_cndmask_b32 {vr(T0)}, {vr(AQ)}, {vr(AQ+1)}, s[90:91]")
        a(f"v_cndmask_b32 {vr(T0)}, {vr(T0)}, {vr(AQ+2)}, s[92:93]")
        a(f"v_cndmask_b32 {vr(T0)}, {vr(T0)}, {vr(AQ+3)}, s[94:95]")
        a(f"v_cndmask_b32 {vr(T0)}, 0, {vr(T0)}, s[46:47]")
        red4(a, T0, T1)
        a(f"v_mul_f32 {vr(T0)}, 0x3b000000, {vr(T0)}")
        a(f"v_fma_f32 {vr(T0)}, -{vr(T4)}, {vr(T4)}, {vr(T0)}")
        a(f"v_max_f32 {vr(T0)}, 0, {vr(T0)}")
        a(f"v_cvt_pk_bf16_f32 {vr(T0)}, 0, {vr(T0)}")
        a(f"v_add_f32 {vr(T0)}, 0x3727c5ac, {vr(T0)}")
        a(f"v_cvt_pk_bf16_f32 {vr(T0)}, 0, {vr(T0)}")
        a(f"v_sqrt_f32 {vr(T0)}, {vr(T0)}")
        a(f"v_cvt_pk_bf16_f32 {vr(T0)}, 0, {vr(T0)}")
        a(f"v_rcp_f32 {vr(vRS[fa])}, {vr(T0)}")

    def call(label):
        a.flush()
        a(f"s_call_b64 s[{sRET}:{sRET+1}], {label}")
        a.flush()

    def read_x(fa):
        for kb in range(16):
            a(f"ds_read_b128 {vr(XA(fa,kb),4)}, {vr(vXB[kb&3])} offset:{(kb>>2)*256}")

    a(f"s_waitcnt vmcnt({16 if 'A' in TOUCH else 15})")
    a("s_barrier")
    stamp(a)
    a(f"s_cmp_lg_u32 s{sW}, 0")
    a("s_cbranch_scc1 NORDY")
    a(f"v_mov_b32 {vr(T1)}, s2")
    a(f"v_mov_b32 {vr(T2)}, 1")
    a("s_mov_b64 exec, 1")
    a(f"global_store_byte {vr(T1)}, {vr(T2)}, s[42:43] sc1")
    a("s_mov_b64 exec, -1")
    a("NORDY:")
    read_x(0)
    for j in range(4): a(f"v_add_u32 {vr(vXB[j])}, 0x10000, {vr(vXB[j])}")
    a("s_waitcnt lgkmcnt(0)")
    a("s_barrier")
    process_fa(0, [w1dma(n) for n in range(8)])
    stamp(a)
    a("s_waitcnt vmcnt(8)")
    a("s_barrier")
    read_x(1)
    a(f"s_lshl_b32 s6, s{sH}, 14")
    a(f"s_lshl_b32 s7, s{sRG}, 14")
    a("s_sub_u32 s6, s6, s7")
    a(f"s_add_u32 s6, s6, {R2 - 65536}")
    for j in range(4): a(f"v_add_u32 {vr(vXB[j])}, s6, {vr(vXB[j])}")
    a("s_waitcnt lgkmcnt(0)")
    a("s_barrier")
    stamp(a)
    process_fa(1, [w1dma(n) for n in range(8, 16)])
    stamp(a)
    def brd(kb):
        return f"ds_read_b128 {vr(FB(kb),4)}, {vr(vXB[kb&3])} offset:{(kb>>2)*256}"
    def ssm_main(ri):
        m = [brd(kb) for kb in range(4)]
        for kb in range(16):
            if kb + 4 < 16: m.append(brd(kb + 4))
            m.append(f"s_waitcnt lgkmcnt({min(4, 15-kb)})")
            for fa in range(2):
                c = "0" if kb == 0 else vr(SA(ri, fa), 4)
                m.append(f"v_mfma_f32_16x16x32_bf16 {vr(SA(ri,fa),4)}, {vr(XA(fa,kb),4)}, {vr(FB(kb),4)}, {c}")
            c = "0" if kb == 0 else vr(CSF, 4)
            m.append(f"v_mfma_f32_16x16x32_bf16 {vr(CSF,4)}, {vr(vONE,4)}, {vr(FB(kb),4)}, {c}")
        return m
    p = Rec()
    p(f"v_lshlrev_b32 {vr(vPm[0])}, 16, {vr(vPm[0])}")
    p(f"v_lshlrev_b32 {vr(vPm[1])}, 16, {vr(vPm[1])}")
    p(f"v_lshlrev_b32 {vr(T0)}, 16, {vr(vPm[2])}")
    p(f"v_mul_f32 {vr(T0)}, {hex(LOG2E)}, {vr(T0)}")
    p(f"v_exp_f32 {vr(T0)}, {vr(T0)}")
    p(f"v_cvt_pk_bf16_f32 {vr(T0)}, 0, {vr(T0)}")
    p(f"v_mul_f32 {vr(vZR)}, {vr(T0)}, {vr(vPm[0])}")
    p(f"v_mul_f32 {vr(vZI)}, {vr(T0)}, {vr(vPm[1])}")
    p(f"v_mul_f32 {vr(vZR)}, {hex(LOG2E)}, {vr(vZR)}")
    p(f"v_mul_f32 {vr(vZI)}, {INV2PI}, {vr(vZI)}")
    cexp(p, vLr, vLi, vZR, vZI, 1, T0, T1)
    p(f"v_add_f32 {vr(T0)}, -1.0, {vr(vLr)}")
    p(f"v_mul_f32 {vr(T1)}, {vr(vPm[0])}, {vr(vPm[0])}")
    p(f"v_fmac_f32 {vr(T1)}, {vr(vPm[1])}, {vr(vPm[1])}")
    p(f"v_rcp_f32 {vr(T1)}, {vr(T1)}")
    p(f"v_mul_f32 {vr(vCr)}, {vr(T0)}, {vr(vPm[0])}")
    p(f"v_fmac_f32 {vr(vCr)}, {vr(vLi)}, {vr(vPm[1])}")
    p(f"v_mul_f32 {vr(vCi)}, {vr(vLi)}, {vr(vPm[0])}")
    p(f"v_fma_f32 {vr(vCi)}, -{vr(T0)}, {vr(vPm[1])}, {vr(vCi)}")
    p(f"v_mul_f32 {vr(vCr)}, {vr(vCr)}, {vr(T1)}")
    p(f"v_mul_f32 {vr(vCi)}, {vr(vCi)}, {vr(T1)}")
    sT, sTE, sST, sPAR = 80, 81, 82, 83
    p(f"s_lshl_b32 s{sT}, s{sH}, 7")
    p(f"s_mul_i32 s6, s{sH}, 96")
    p(f"s_add_u32 s{sTE}, s6, 128")
    p(f"s_mul_i32 s{sST}, s{sC}, 112")
    p(f"s_mul_i32 s6, s{sG}, 7")
    p(f"s_add_u32 s{sST}, s{sST}, s6")
    p(f"s_lshl_b32 s6, s{sH}, 2")
    p(f"s_add_u32 s{sST}, s{sST}, s6")
    p(f"s_lshl_b32 s{sST}, s{sST}, 12")
    p(f"s_lshl_b32 s6, s{sRG}, 10")
    p(f"s_add_u32 s{sST}, s{sST}, s6")
    p(f"s_mov_b32 s{sPAR}, 0")
    p(f"s_lshl_b32 s7, s{sRG}, 5")
    p(f"s_add_u32 s7, s7, s{sT}")
    p(f"v_xor_b32 {vr(vTC[0])}, s7, {vr(vFF)}")
    p(f"v_add_u32 {vr(vTC[0])}, {vr(vTC[0])}, {vr(vFP)}")
    p(f"v_add_u32 {vr(vTC[1])}, 0x10000, {vr(vTC[0])}")
    p("s_lshl_b32 s7, s7, 8")
    p(f"v_add_u32 {vr(T5)}, s7, {vr(vCSa)}")
    p(f"s_lshl_b32 s7, s{sT}, 8")
    p(f"v_add_u32 {vr(vCSa)}, s7, {vr(vCSa)}")
    merge(a, ssm_main(0), p.l)
    a(f"v_mov_b32 {vr(vCS[0])}, {vr(CSF)}")
    srd(a, SBD, 24, 25, 524288)
    a("s_waitcnt vmcnt(0)")
    a("s_barrier")
    stamp(a)
    if "B" in TOUCH:
        a(f"s_mul_i32 s6, s{sJ}, 448")
        a(f"s_mul_i32 s7, s{sW}, 56")
        a("s_add_u32 s6, s6, s7")
        a(f"v_min_u32 {vr(T0)}, 55, {vr(vL)}")
        a(f"v_add_u32 {vr(T0)}, s6, {vr(T0)}")
        a(f"v_lshlrev_b32 {vr(T0)}, 7, {vr(T0)}")
        a(f"global_load_dword {vr(63)}, {vr(T0)}, s[38:39]")
    if "C" in TOUCH:
        a(f"s_cmp_eq_u32 s{sH}, 0")
        a("s_cselect_b32 s8, s26, s28")
        a("s_cselect_b32 s9, s27, s29")
        a(f"s_lshl_b32 s6, s{sJ}, 7")
        a(f"s_lshl_b32 s7, s{sRG}, 5")
        a("s_add_u32 s6, s6, s7")
        a(f"v_and_b32 {vr(T0)}, 31, {vr(vL)}")
        a(f"v_add_u32 {vr(T0)}, s6, {vr(T0)}")
        a(f"v_lshlrev_b32 {vr(T0)}, 7, {vr(T0)}")
        a(f"global_load_dword {vr(63)}, {vr(T0)}, s[8:9]")
    def trd(kb, nxt=False):
        if nxt: base, off = vTN, 8192 * kb
        elif kb < 8: base, off = vTC[0], 8192 * kb
        else: base, off = vTC[1], 8192 * (kb - 8)
        d = FB(kb)
        return [f"ds_read_b64_tr_b16 {vr(d,2)}, {vr(base)} offset:{off}",
                f"ds_read_b64_tr_b16 {vr(d+2,2)}, {vr(base)} offset:{off+1024}"]
    m = []
    for kb in range(6): m += trd(kb)
    for kb in range(16):
        if kb + 6 < 16: m += trd(kb + 6)
        m.append(f"s_waitcnt lgkmcnt({2*min(6, 15-kb)})")
        c = "0" if kb == 0 else vr(CSF, 4)
        m.append(f"v_mfma_f32_16x16x32_bf16 {vr(CSF,4)}, {vr(FB(kb),4)}, {vr(vONE,4)}, {c}")
    merge(a, m, [bdma(n) for n in range(4)])
    a(f"v_xor_b32 {vr(vTC[0])}, s{sT}, {vr(vFF)}")
    a(f"v_add_u32 {vr(vTC[0])}, {vr(vTC[0])}, {vr(vFP)}")
    a(f"v_add_u32 {vr(vTC[1])}, 0x10000, {vr(vTC[0])}")
    for kb in range(4):
        for s in trd(kb): a(s)
    set_exec(a, 0x0001000100010001)
    a(f"ds_write_b128 {vr(T5)}, {vr(CSF,4)}")
    a("s_mov_b64 exec, -1")
    a("s_waitcnt lgkmcnt(0)")
    a("s_barrier")
    stamp(a)
    def epi_ops():
        o = silu_ops(EV, ET)
        for k in range(4):
            o.append(f"v_cvt_pk_bf16_f32 {vr(PK+k)}, {vr(EV[2*k])}, {vr(EV[2*k+1])}")
        return o
    def epi_head():
        for k in range(8):
            a(f"v_fma_f32 {vr(EV[k])}, {vr(vNM[k>>2])}, {vr(CSF + (k&3))}, {vr(ACC[k>>2] + (k&3))}")
        for k in range(8):
            a(f"v_mul_f32 {vr(EV[k])}, {vr(EV[k])}, {vr(vRS[k>>2])}")
    def tile_store():
        a(f"v_permlane16_swap_b32 {vr(PK)}, {vr(PK+2)}")
        a(f"v_permlane16_swap_b32 {vr(PK+1)}, {vr(PK+3)}")
        a(f"buffer_store_dwordx4 {vr(PK,4)}, {vr(vH1)}, s[{SWS}:{SWS+3}], s{sST} offen sc1")
        a(f"s_add_u32 s{sST}, s{sST}, 4096")
    a("FFN_LOOP:")
    epi_head()
    a(f"ds_read_b128 {vr(CSF,4)}, {vr(vCSa)}")
    a(f"v_add_u32 {vr(vCSa)}, 0x2000, {vr(vCSa)}")
    a(f"s_add_u32 s{sT}, s{sT}, 32")
    a(f"v_xor_b32 {vr(vTN)}, s{sT}, {vr(vFF)}")
    a(f"v_add_u32 {vr(vTN)}, {vr(vTN)}, {vr(vFP)}")
    main = []
    for kb in range(16):
        main += trd(kb + 4) if kb + 4 < 16 else trd(kb + 4 - 16, True)
        main.append("s_waitcnt lgkmcnt(8)")
        for fa in range(2):
            c = "0" if kb == 0 else vr(ACC[fa], 4)
            main.append(f"v_mfma_f32_16x16x32_bf16 {vr(ACC[fa],4)}, {vr(FB(kb),4)}, {vr(XA(fa,kb),4)}, {c}")
    merge(a, main, epi_ops())
    a(f"v_mov_b32 {vr(vTC[0])}, {vr(vTN)}")
    a(f"v_add_u32 {vr(vTC[1])}, 0x10000, {vr(vTN)}")
    a.flush()
    a(f"s_cmp_eq_u32 s{sPAR}, 0")
    a(f"s_mov_b32 s{sPAR}, 1")
    a("s_cbranch_scc1 FFN_NEXT")
    tile_store()
    a("FFN_NEXT:")
    a(f"s_cmp_lt_u32 s{sT}, s{sTE}")
    a("s_cbranch_scc1 FFN_LOOP")
    epi_head()
    sP1s, sP2s, sP1st, sP2st, sM1, sM2, sIT, sSTOP, sSL, sTY = 80, 81, 84, 83, 85, 86, 87, 90, 91, 92
    vP1F, vP1Y, vP2, vP1 = 14, 15, 16, 17
    a(f"v_and_b32 {vr(T0)}, 7, {vr(vL)}")
    a(f"v_lshrrev_b32 {vr(T1)}, 3, {vr(vL)}")
    a(f"s_lshl_b32 s6, s{sW}, 3")
    a(f"v_add_u32 {vr(T2)}, s6, {vr(T1)}")
    a(f"v_lshlrev_b32 {vr(T3)}, 1, {vr(vQ)}")
    a(f"v_xor_b32 {vr(T3)}, {vr(T3)}, {vr(T0)}")
    a(f"s_and_b32 s7, s{sW}, 1")
    a(f"v_xor_b32 {vr(T3)}, s7, {vr(T3)}")
    a(f"v_lshlrev_b32 {vr(T3)}, 4, {vr(T3)}")
    a(f"v_lshl_add_u32 {vr(vP1Y)}, {vr(T2)}, 10, {vr(T3)}")
    a(f"v_and_b32 {vr(T3)}, 1, {vr(vQ)}")
    a(f"v_xor_b32 {vr(T4)}, {vr(T3)}, {vr(vL)}")
    a(f"s_lshr_b32 s6, s{sW}, 1")
    a("s_lshl_b32 s6, s6, 12")
    a("s_lshl_b32 s7, s7, 10")
    a("s_add_u32 s6, s6, s7")
    a(f"v_lshl_add_u32 {vr(vP1F)}, {vr(T4)}, 4, s6")
    a(f"v_lshlrev_b32 {vr(T3)}, 2, {vr(T3)}")
    a(f"v_xor_b32 {vr(T3)}, {vr(T3)}, {vr(T0)}")
    a(f"v_lshlrev_b32 {vr(T3)}, 4, {vr(T3)}")
    a(f"v_lshl_add_u32 {vr(vP2)}, {vr(T2)}, 10, {vr(T3)}")
    vP2Y = 18
    a(f"v_lshl_add_u32 {vr(vP2Y)}, {vr(T2)}, 7, {vr(T3)}")
    a(f"v_mov_b32 {vr(vP1)}, {vr(vP1F)}")
    srd(a, SP2, 38, 39, 1835008)
    for k in range(4): a(f"s_mov_b32 s{SP1+k}, s{SWS+k}")
    a(f"s_lshl_b32 s{sP2s}, s{sCT}, 7")
    a(f"s_mov_b32 s{sP2st}, 65536")
    a(f"s_lshl_b32 s{sM1}, s{sW}, 10")
    a(f"s_add_u32 s{sM2}, s{sM1}, 8192")
    a("s_waitcnt vmcnt(2) lgkmcnt(0)")
    a("s_barrier")
    stamp(a)
    a(f"s_cmp_lg_u32 s{sW}, 0")
    a("s_cbranch_scc1 NORDY2")
    a(f"v_lshlrev_b32 {vr(61)}, 2, {vr(vL)}")
    a(f"global_load_dword {vr(62)}, {vr(61)}, s[42:43] sc1")
    a("NORDY2:")
    def p2_issue(slot):
        return (f"s_add_u32 m0, s{sM2}, {slot*SLOT}",
                f"buffer_load_dwordx4 {vr(vP2)}, s[{SP2}:{SP2+3}], s{sP2s} offen sc1 lds",
                f"s_add_u32 s{sP2s}, s{sP2s}, s{sP2st}")
    eo = epi_ops()
    class TS:
        pass
    ts = Rec(); _a = a
    ts(f"v_permlane16_swap_b32 {vr(PK)}, {vr(PK+2)}")
    ts(f"v_permlane16_swap_b32 {vr(PK+1)}, {vr(PK+3)}")
    ts(f"buffer_store_dwordx4 {vr(PK,4)}, {vr(vH1)}, s[{SWS}:{SWS+3}], s{sST} offen sc1")
    fill = []
    fill += eo + [tuple(ts.l)] + [p2_issue(s_) for s_ in range(8)]
    merge(a, ssm_main(1), fill)
    a(f"v_mov_b32 {vr(vCS[1])}, {vr(CSF)}")
    a("s_barrier")
    stamp(a)
    def setflag(base):
        a(f"v_mov_b32 {vr(T0)}, 1")
        a(f"s_lshl_b32 s7, s{sC}, 7")
        a(f"s_lshl_b32 s6, s{sG}, 2")
        a("s_add_u32 s7, s7, s6")
        a(f"s_add_u32 s7, s7, {base}")
        a(f"v_mov_b32 {vr(T1)}, 0")
        a("s_mov_b64 exec, 1")
        a(f"buffer_store_dword {vr(T0)}, {vr(T1)}, s[{SWS}:{SWS+3}], s7 offen sc1")
        a("s_mov_b64 exec, -1")
    def poll(tag, base):
        a.flush()
        a(f"s_cmp_lg_u32 s{sW}, 0")
        a(f"s_cbranch_scc1 POLL_OK{tag}")
        a(f"s_lshl_b32 s7, s{sC}, 7")
        a(f"s_add_u32 s7, s7, {base}")
        a(f"v_lshlrev_b32 {vr(T0)}, 2, {vr(vI)}")
        a("s_mov_b32 s15, 0")
        if tag == "H1":
            a("RDYL:")
            a(f"v_cmp_ne_u32 vcc, 0x01010101, {vr(62)}")
            a("s_cmp_eq_u64 vcc, 0")
            a("s_cbranch_scc1 RDYOK")
            a("s_add_u32 s15, s15, 1")
            a("s_cmp_gt_u32 s15, 0x8000")
            a("s_cbranch_scc1 RDYOK")
            a("s_sleep 1")
            a(f"global_load_dword {vr(62)}, {vr(61)}, s[42:43] sc1")
            a("s_waitcnt vmcnt(0)")
            a("s_branch RDYL")
            a("RDYOK:")
        a(f"POLL{tag}:")
        a("s_add_u32 s15, s15, 1")
        a("s_cmp_gt_u32 s15, 0x8000")
        a(f"s_cbranch_scc1 POLL_OK{tag}")
        a(f"buffer_load_dword {vr(T1)}, {vr(T0)}, s[{SWS}:{SWS+3}], s7 offen sc1")
        a("s_waitcnt vmcnt(0)")
        a(f"v_cmp_eq_u32 vcc, 0, {vr(T1)}")
        a("s_cmp_eq_u64 vcc, 0")
        a(f"s_cbranch_scc1 POLL_OK{tag}")
        a("s_sleep 1")
        a(f"s_branch POLL{tag}")
        a(f"POLL_OK{tag}:")
        a("s_barrier")
    RE = lambda t: SA(0, t >> 2) + (t & 3)
    IM = lambda t: SA(1, t >> 2) + (t & 3)
    a(f"v_lshrrev_b32 {vr(T0)}, 2, {vr(vI)}")
    a(f"v_lshlrev_b32 {vr(T0)}, 3, {vr(T0)}")
    a(f"v_and_b32 {vr(T1)}, 3, {vr(vI)}")
    a(f"v_add_u32 {vr(T0)}, {vr(T0)}, {vr(T1)}")
    a(f"s_lshl_b32 s6, s{sRG}, 5")
    a(f"v_add_u32 {vr(T0)}, s6, {vr(T0)}")
    a(f"v_lshlrev_b32 {vr(T0)}, 2, {vr(T0)}")
    a(f"v_add_u32 {vr(T0)}, {SCR}, {vr(T0)}")
    a(f"ds_write_b32 {vr(T0)}, {vr(vRS[0])}")
    a(f"ds_write_b32 {vr(T0)}, {vr(vRS[1])} offset:16")
    a(f"ds_write_b32 {vr(T0)}, {vr(vNM[0])} offset:512")
    a(f"ds_write_b32 {vr(T0)}, {vr(vNM[1])} offset:528")
    a(f"s_lshl_b32 s6, s{sRG}, 7")
    a(f"s_add_u32 s6, s6, {SCR}")
    a(f"v_lshl_add_u32 {vr(T1)}, {vr(vQ)}, 5, s6")
    RT = 64; MT = 96
    a("s_waitcnt lgkmcnt(0)")
    a(f"ds_read_b128 {vr(RT,4)}, {vr(T1)}")
    a(f"ds_read_b128 {vr(RT+4,4)}, {vr(T1)} offset:16")
    a(f"ds_read_b128 {vr(MT,4)}, {vr(T1)} offset:512")
    a(f"ds_read_b128 {vr(MT+4,4)}, {vr(T1)} offset:528")
    L8r, L8i, L32r, L32i, LQr, LQi = 72, 73, 74, 75, 76, 77
    cexp(a, L8r, L8i, vZR, vZI, 8, T2, T3)
    cexp(a, L32r, L32i, vZR, vZI, 32, T2, T3)
    a(f"v_lshlrev_b32 {vr(T4)}, 3, {vr(vQ)}")
    a(f"v_cvt_f32_u32 {vr(T4)}, {vr(T4)}")
    cexp(a, LQr, LQi, vZR, vZI, vr(T4), T2, T3)
    a("s_waitcnt lgkmcnt(0)")
    for t in range(8):
        a(f"v_fmac_f32 {vr(RE(t))}, {vr(MT+t)}, {vr(vCS[0])}")
        a(f"v_fmac_f32 {vr(IM(t))}, {vr(MT+t)}, {vr(vCS[1])}")
        a(f"v_mul_f32 {vr(RE(t))}, {vr(RE(t))}, {vr(RT+t)}")
        a(f"v_mul_f32 {vr(IM(t))}, {vr(IM(t))}, {vr(RT+t)}")
    for t in range(1, 8):
        cfma(a, RE(t), IM(t), vLr, vLi, RE(t-1), IM(t-1))
    S0 = 78
    a(f"v_mov_b32 {vr(S0)}, {vr(RE(7))}")
    a(f"v_mov_b32 {vr(S0+1)}, {vr(IM(7))}")
    a(f"s_lshl_b32 s6, s{sW}, 9")
    a(f"s_add_u32 s6, s6, {SCR+1024}")
    a(f"v_lshl_add_u32 {vr(T0)}, {vr(vL)}, 3, s6")
    a(f"ds_write_b64 {vr(T0)}, {vr(S0,2)}")
    a(f"v_lshl_add_u32 {vr(T1)}, {vr(vI)}, 3, s6")
    a(f"v_mov_b32 {vr(vPr)}, 0")
    a(f"v_mov_b32 {vr(vPi)}, 0")
    a("s_waitcnt lgkmcnt(0)")
    PB = 80
    for k in range(3):
        a(f"ds_read_b64 {vr(PB+2*k,2)}, {vr(T1)} offset:{128*k}")
    def horner(S, lr, li, pr, pi):
        cfma(a, S, S+1, lr, li, pr, pi)
        a(f"v_mov_b32 {vr(pr)}, {vr(S)}")
        a(f"v_mov_b32 {vr(pi)}, {vr(S+1)}")
    for k in range(3):
        a(f"s_waitcnt lgkmcnt({2-k})")
        set_exec(a, (~((1 << (16*(k+1))) - 1)) & 0xffffffffffffffff)
        horner(PB+2*k, L8r, L8i, vPr, vPi)
    cfma(a, S0, S0+1, L8r, L8i, vPr, vPi)
    a(f"s_lshl_b32 s7, s{sW}, 7")
    a(f"s_add_u32 s7, s7, {SCR+1024+4096}")
    a(f"v_lshl_add_u32 {vr(T0)}, {vr(vI)}, 3, s7")
    a(f"ds_write_b64 {vr(T0)}, {vr(S0,2)}")
    a("s_mov_b64 exec, -1")
    a(f"s_lshl_b32 s7, s{sH}, 9")
    a(f"s_add_u32 s7, s7, {SCR+1024+4096}")
    a(f"v_lshl_add_u32 {vr(T0)}, {vr(vI)}, 3, s7")
    a("s_waitcnt vmcnt(8) lgkmcnt(0)")
    a("s_barrier")
    stamp(a)
    for k in range(4):
        a(f"ds_read_b64 {vr(PB+2*k,2)}, {vr(T0)} offset:{128*k}")
    a(f"s_cmp_lg_u32 s{sW}, 0")
    a("s_cbranch_scc1 NOFLAG1")
    setflag(WS_F1)
    a("NOFLAG1:")
    CWr, CWi = 88, 89
    a(f"v_mov_b32 {vr(CWr)}, 0")
    a(f"v_mov_b32 {vr(CWi)}, 0")
    a("s_waitcnt lgkmcnt(0)")
    for k in range(3):
        a.flush()
        a(f"s_cmp_le_u32 s{sRG}, {k}")
        a("s_cbranch_scc1 PFX_DONE")
        horner(PB+2*k, L32r, L32i, CWr, CWi)
    cfma(a, PB+6, PB+7, L32r, L32i, CWr, CWi)
    a(f"s_lshl_b32 s6, s{sC}, 12")
    a(f"s_lshl_b32 s7, s{sG}, 8")
    a("s_add_u32 s6, s6, s7")
    a(f"s_lshl_b32 s7, s{sH}, 7")
    a("s_add_u32 s6, s6, s7")
    a(f"s_add_u32 s6, s6, {WS_E}")
    a(f"v_lshlrev_b32 {vr(T1)}, 3, {vr(vI)}")
    a(f"v_or_b32 {vr(PB+6)}, 1, {vr(PB+6)}")
    set_exec(a, 0xffff)
    a(f"buffer_store_dwordx2 {vr(PB+6,2)}, {vr(T1)}, s[{SWS}:{SWS+3}], s6 offen sc1")
    a("s_mov_b64 exec, -1")
    a("PFX_DONE:")
    cfma(a, vPr, vPi, LQr, LQi, CWr, CWi)
    AF, AY = 128, 144
    F1 = lambda s, k: 160 + 32 * s + 8 * k
    F2 = lambda s, k: 164 + 32 * s + 8 * k
    vR1F, vR1Y, vR2F, vR2Y = 224, 225, 226, 227
    vR = [[228, 229, 230], [231, 232, 233]]
    vA = [234, 235, 236]
    a(f"s_lshr_b32 s6, s{sW}, 1")
    a("s_and_b32 s6, s6, 1")
    a(f"s_and_b32 s7, s{sW}, 1")
    a(f"v_lshrrev_b32 {vr(T1)}, 5, {vr(vL)}")
    a(f"v_bfe_u32 {vr(T2)}, {vr(vL)}, 3, 1")
    a(f"v_and_b32 {vr(T3)}, 31, {vr(vL)}")
    a(f"v_lshl_add_u32 {vr(T0)}, {vr(T3)}, 1, {vr(T1)}")
    a(f"v_xor_b32 {vr(T0)}, {vr(T0)}, {vr(T2)}")
    a(f"s_lshl_b32 s8, s{sH}, 12")
    a("s_lshl_b32 s9, s6, 10")
    a("s_add_u32 s8, s8, s9")
    a(f"v_lshl_add_u32 {vr(vR1F)}, {vr(T0)}, 4, s8")
    a(f"s_lshl_b32 s8, s{sH}, 2")
    a(f"v_or_b32 {vr(T0)}, s8, {vr(T1)}")
    a(f"v_and_b32 {vr(T4)}, 6, {vr(vL)}")
    a(f"v_xor_b32 {vr(T0)}, {vr(T0)}, {vr(T4)}")
    a(f"v_xor_b32 {vr(T0)}, {vr(T0)}, {vr(T2)}")
    a(f"v_lshlrev_b32 {vr(T0)}, 4, {vr(T0)}")
    a(f"v_lshl_add_u32 {vr(T0)}, {vr(T3)}, 7, {vr(T0)}")
    a("s_lshl_b32 s9, s7, 12")
    a(f"v_add_u32 {vr(vR1Y)}, s9, {vr(T0)}")
    a(f"v_bfe_u32 {vr(T0)}, {vr(vL)}, 2, 2")
    a(f"v_lshl_add_u32 {vr(T1)}, {vr(T1)}, 3, {vr(T0)}")
    a(f"v_lshlrev_b32 {vr(T1)}, 7, {vr(T1)}")
    a(f"v_bfe_u32 {vr(T0)}, {vr(vL)}, 4, 1")
    a(f"v_lshlrev_b32 {vr(T0)}, 1, {vr(T0)}")
    a(f"v_bfe_u32 {vr(T3)}, {vr(vL)}, 1, 1")
    a(f"v_add_u32 {vr(T0)}, {vr(T0)}, {vr(T3)}")
    a(f"v_lshlrev_b32 {vr(T3)}, 2, {vr(T2)}")
    a(f"v_xor_b32 {vr(T2)}, {vr(T0)}, {vr(T3)}")
    a(f"v_and_b32 {vr(T3)}, 1, {vr(vL)}")
    a(f"v_lshl_add_u32 {vr(T1)}, {vr(T3)}, 3, {vr(T1)}")
    a(f"s_lshl_b32 s8, s{sH}, 12")
    a(f"s_add_u32 s8, s8, 8192")
    a(f"v_add_u32 {vr(T1)}, s8, {vr(T1)}")
    a("s_lshl_b32 s8, s7, 2")
    a("s_lshl_b32 s9, s6, 2")
    a(f"v_xor_b32 {vr(T3)}, s8, {vr(T2)}")
    a(f"v_lshl_add_u32 {vr(vR2F)}, {vr(T3)}, 4, {vr(T1)}")
    a(f"v_xor_b32 {vr(T3)}, s9, {vr(T2)}")
    a(f"v_lshl_add_u32 {vr(vR2Y)}, {vr(T3)}, 4, {vr(T1)}")
    def set_reads(hf, ty):
        if ty == "F":
            a(f"v_mov_b32 {vr(vR[hf][0])}, {vr(vR1F)}")
            a(f"v_add_u32 {vr(vR[hf][1])}, 0x800, {vr(vR1F)}")
            a(f"v_mov_b32 {vr(vR[hf][2])}, {vr(vR2F)}")
        else:
            a(f"v_mov_b32 {vr(vR[hf][0])}, {vr(vR1Y)}")
            a(f"v_xor_b32 {vr(vR[hf][1])}, 32, {vr(vR1Y)}")
            a(f"v_mov_b32 {vr(vR[hf][2])}, {vr(vR2Y)}")
    set_reads(0, "F"); set_reads(1, "F")
    for r in range(32): a(f"v_mov_b32 {vr(AF+r)}, 0")
    a(f"s_mov_b32 s{sIT}, 0")
    a(f"s_mov_b32 s{sSL}, 0")
    a(f"s_mov_b32 s{sTY}, 0")
    a(f"s_mul_i32 s{sP1s}, s{sC}, {112*4096}")
    a(f"s_lshl_b32 s6, s{sHH}, 11")
    a(f"s_add_u32 s{sP1s}, s{sP1s}, s6")
    a(f"s_mov_b32 s{sP1st}, 16384")
    Gr, Gi = 64, 65
    EB = 66; WB = 74; LJr, LJi = 82, 83
    vEo = 90
    a(f"v_mov_b32 {vr(Gr)}, 0")
    a(f"v_mov_b32 {vr(Gi)}, 0")
    a(f"v_lshlrev_b32 {vr(vEo)}, 12, {vr(vQ)}")
    a(f"v_lshl_add_u32 {vr(vEo)}, {vr(vI)}, 3, {vr(vEo)}")
    a(f"s_lshl_b32 s11, s{sG}, 8")
    a(f"s_lshl_b32 s6, s{sH}, 7")
    a("s_add_u32 s11, s11, s6")
    a(f"s_add_u32 s11, s11, {WS_E}")
    a("s_add_u32 s12, s11, 16384")
    a("s_add_u32 s13, s11, 32768")
    a("s_add_u32 s14, s11, 49152")
    def eloads():
        for m_ in range(4):
            a(f"buffer_load_dwordx2 {vr(EB+2*m_,2)}, {vr(vEo)}, s[{SWS}:{SWS+3}], s{11+m_} offen sc1")
    a(f"s_sub_u32 s6, s{sC}, 1")
    a(f"v_sub_u32 {vr(T4)}, s6, {vr(vQ)}")
    for m_ in range(4):
        a(f"v_add_u32 {vr(T5)}, {(-4*m_) & 0xffffffff}, {vr(T4)}")
        a(f"v_cmp_le_i32 vcc, 0, {vr(T5)}")
        a(f"v_max_i32 {vr(T5)}, 0, {vr(T5)}")
        a(f"v_lshlrev_b32 {vr(T5)}, 7, {vr(T5)}")
        a(f"v_cvt_f32_u32 {vr(T5)}, {vr(T5)}")
        cexp(a, WB+2*m_, WB+2*m_+1, vZR, vZI, vr(T5), T2, T3)
        a(f"v_cndmask_b32 {vr(WB+2*m_)}, 0, {vr(WB+2*m_)}, vcc")
        a(f"v_cndmask_b32 {vr(WB+2*m_+1)}, 0, {vr(WB+2*m_+1)}, vcc")
    a(f"v_lshlrev_b32 {vr(T5)}, 3, {vr(vQ)}")
    a(f"s_lshl_b32 s6, s{sRG}, 5")
    a(f"v_add_u32 {vr(T5)}, s6, {vr(T5)}")
    a(f"v_cvt_f32_u32 {vr(T5)}, {vr(T5)}")
    cexp(a, LJr, LJi, vZR, vZI, vr(T5), T2, T3)
    stamp(a)
    poll("H1", WS_F1)
    stamp(a)
    eloads()
    nnew = 8
    if "D" in TOUCH:
        nnew = 9
        a(f"s_mul_i32 s6, s{sW}, 28")
        a(f"v_min_u32 {vr(T0)}, 27, {vr(vL)}")
        a(f"v_add_u32 {vr(T0)}, s6, {vr(T0)}")
        a(f"v_lshrrev_b32 {vr(T1)}, 4, {vr(T0)}")
        a(f"v_and_b32 {vr(T0)}, 15, {vr(T0)}")
        a(f"v_lshlrev_b32 {vr(T0)}, 7, {vr(T0)}")
        a(f"v_lshl_add_u32 {vr(T0)}, {vr(T1)}, 12, {vr(T0)}")
        a(f"s_mul_i32 s6, s{sCT}, {14*4096}")
        a(f"s_add_u32 s6, s6, s{sP1s}")
    for s_ in range(8):
        a(f"s_add_u32 m0, s{sM1}, {s_*SLOT}")
        a(f"buffer_load_dwordx4 {vr(vP1)}, s[{SP1}:{SP1+3}], s{sP1s} offen sc1 lds")
        a(f"s_add_u32 s{sP1s}, s{sP1s}, s{sP1st}")
        if s_ == 1 and "D" in TOUCH:
            a(f"buffer_load_dword {vr(63)}, {vr(T0)}, s[{SWS}:{SWS+3}], s6 offen sc1")
    a("s_mov_b32 s15, 0")
    a(f"s_waitcnt vmcnt({nnew})")
    a("EPOLL:")
    a(f"v_mov_b32 {vr(T2)}, 1")
    for m_ in range(4):
        a(f"v_add_u32 {vr(T5)}, {(-4*m_) & 0xffffffff}, {vr(T4)}")
        a(f"v_lshrrev_b32 {vr(T5)}, 31, {vr(T5)}")
        a(f"v_or_b32 {vr(T5)}, {vr(T5)}, {vr(EB+2*m_)}")
        a(f"v_and_b32 {vr(T2)}, {vr(T2)}, {vr(T5)}")
    a(f"v_cmp_eq_u32 vcc, 0, {vr(T2)}")
    a("s_cmp_eq_u64 vcc, 0")
    a("s_cbranch_scc1 EPOLL_OK")
    a("s_add_u32 s15, s15, 1")
    a("s_cmp_gt_u32 s15, 0x8000")
    a("s_cbranch_scc1 EPOLL_OK")
    a("s_sleep 1")
    eloads()
    a("s_waitcnt vmcnt(0)")
    a("s_branch EPOLL")
    a("EPOLL_OK:")
    stamp(a)
    for m_ in range(4):
        cfma(a, Gr, Gi, WB+2*m_, WB+2*m_+1, EB+2*m_, EB+2*m_+1)
    red4(a, Gr, T2)
    red4(a, Gi, T3)
    cfma(a, vPr, vPi, LJr, LJi, Gr, Gi)
    CNr, CNi, HR, HI = 84, 85, 86, 88
    OR_, OI_ = 64, 68
    for t in range(8):
        a(f"v_mul_f32 {vr(CNr)}, {vr(vLr)}, {vr(vPr)}")
        a(f"v_mul_f32 {vr(CNi)}, {vr(vLr)}, {vr(vPi)}")
        a(f"v_fma_f32 {vr(CNr)}, -{vr(vLi)}, {vr(vPi)}, {vr(CNr)}")
        a(f"v_fmac_f32 {vr(CNi)}, {vr(vLi)}, {vr(vPr)}")
        a(f"v_mov_b32 {vr(vPr)}, {vr(CNr)}")
        a(f"v_mov_b32 {vr(vPi)}, {vr(CNi)}")
        a(f"v_add_f32 {vr(RE(t))}, {vr(RE(t))}, {vr(CNr)}")
        a(f"v_add_f32 {vr(IM(t))}, {vr(IM(t))}, {vr(CNi)}")
        h0, h1 = HR + (t & 1), HI + (t & 1)
        a(f"v_mul_f32 {vr(h0)}, {vr(vCr)}, {vr(RE(t))}")
        a(f"v_mul_f32 {vr(h1)}, -{vr(vCr)}, {vr(IM(t))}")
        a(f"v_fma_f32 {vr(h0)}, -{vr(vCi)}, {vr(IM(t))}, {vr(h0)}")
        a(f"v_fma_f32 {vr(h1)}, -{vr(vCi)}, {vr(RE(t))}, {vr(h1)}")
        if t & 1:
            a(f"v_cvt_pk_bf16_f32 {vr(OR_ + (t>>1))}, {vr(HR)}, {vr(HR+1)}")
            a(f"v_cvt_pk_bf16_f32 {vr(OI_ + (t>>1))}, {vr(HI)}, {vr(HI+1)}")
    a(f"v_lshlrev_b32 {vr(T0)}, 7, {vr(vI)}")
    a(f"v_lshl_add_u32 {vr(T0)}, {vr(vQ)}, 4, {vr(T0)}")
    a(f"s_lshl_b32 s6, s{sC}, 18")
    a(f"s_lshr_b32 s7, s{sRG}, 1")
    a("s_lshl_b32 s7, s7, 17")
    a("s_add_u32 s6, s6, s7")
    a(f"s_lshl_b32 s7, s{sG}, 12")
    a("s_add_u32 s6, s6, s7")
    a(f"s_lshl_b32 s7, s{sH}, 11")
    a("s_add_u32 s6, s6, s7")
    a(f"s_and_b32 s7, s{sRG}, 1")
    a("s_lshl_b32 s7, s7, 6")
    a("s_add_u32 s6, s6, s7")
    a(f"s_add_u32 s6, s6, {WS_HH}")
    a(f"s_add_u32 s7, s6, {512*128}")
    a(f"buffer_store_dwordx4 {vr(OR_,4)}, {vr(T0)}, s[{SWS}:{SWS+3}], s6 offen sc1")
    a(f"buffer_store_dwordx4 {vr(OI_,4)}, {vr(T0)}, s[{SWS}:{SWS+3}], s7 offen sc1")
    stamp(a)
    def rd_list(st, A):
        o = []
        for k in range(4):
            off = 16384 * (k >> 1)
            o.append(f"ds_read_b128 {vr(F1(st,k),4)}, {vr(A[k&1])} offset:{off}")
            o.append(f"ds_read_b64_tr_b16 {vr(F2(st,k),2)}, {vr(A[2])} offset:{off + 2048*(k&1)}")
            o.append(f"ds_read_b64_tr_b16 {vr(F2(st,k)+2,2)}, {vr(A[2])} offset:{off + 2048*(k&1) + 512}")
        return o
    a("s_waitcnt vmcnt(8)")
    a("s_barrier")
    stamp(a)
    for s in rd_list(0, vR[0]): a(s)
    cur_it = [0]
    def run(stop):
        ty = "F" if cur_it[0] < 14 else "Y"
        a(f"s_mov_b32 s{sSTOP}, {stop}")
        call(f"P{ty}{cur_it[0] & 1}")
        cur_it[0] = stop
    a("s_waitcnt vmcnt(6)")
    run(1)
    run(EV_HHF)
    a(f"s_cmp_lg_u32 s{sW}, 0")
    a("s_cbranch_scc1 NOFLAG2")
    setflag(WS_F2)
    a("NOFLAG2:")
    run(EV_HHP)
    stamp(a)
    poll("HH", WS_F2)
    stamp(a)
    if "E" in TOUCH:
        a(f"s_lshl_b32 s6, s{sCT}, 7")
        a(f"s_lshl_b32 s7, s{sW}, 4")
        a("s_add_u32 s6, s6, s7")
        a(f"v_add_u32 {vr(T0)}, s6, {vr(vI)}")
        a(f"v_lshlrev_b32 {vr(T0)}, 7, {vr(T0)}")
        a(f"s_lshl_b32 s6, s{sC}, 18")
        a(f"s_lshl_b32 s7, s{sHH}, 17")
        a("s_add_u32 s6, s6, s7")
        a(f"s_add_u32 s6, s6, {WS_HH}")
        a(f"buffer_load_dword {vr(63)}, {vr(T0)}, s[{SWS}:{SWS+3}], s6 offen sc1")
    if EV_HHP < 10: run(10)
    srd(a, SP1, 26, 27, 524288)
    for k in range(4): a(f"s_mov_b32 s{SP2+k}, s{SWS+k}")
    a(f"v_mov_b32 {vr(vP1)}, {vr(vP1Y)}")
    a(f"v_mov_b32 {vr(vP2)}, {vr(vP2Y)}")
    a(f"s_lshl_b32 s{sP1s}, s{sCT}, 16")
    a(f"s_mov_b32 s{sP1st}, 128")
    a(f"s_lshl_b32 s6, s{sC}, 18")
    a(f"s_lshl_b32 s7, s{sHH}, 17")
    a("s_add_u32 s6, s6, s7")
    a(f"s_add_u32 s{sP2s}, s6, {WS_HH}")
    a(f"s_mov_b32 s{sP2st}, 8192")
    run(13)
    set_reads(1, "Y")
    run(14)
    stamp(a)
    set_reads(0, "Y")
    srd(a, SP1, 28, 29, 524288)
    a(f"s_lshl_b32 s{sP1s}, s{sCT}, 16")
    XV = 240; vXo, vOo, vDk, vSo = 237, 238, 239, 19
    srd(a, SO, 40, 41, 4194304)
    a(f"s_lshr_b32 s6, s{sW}, 1")
    a("s_and_b32 s6, s6, 1")
    a("s_lshl_b32 s6, s6, 5")
    a(f"s_lshl_b32 s7, s{sH}, 4")
    a("s_add_u32 s6, s6, s7")
    a(f"s_lshl_b32 s7, s{sHH}, 6")
    a("s_add_u32 s6, s6, s7")
    a(f"v_lshrrev_b32 {vr(T1)}, 5, {vr(vL)}")
    a(f"v_lshl_add_u32 {vr(T1)}, {vr(T1)}, 2, s6")
    a(f"v_lshlrev_b32 {vr(vSo)}, 2, {vr(T1)}")
    a(f"v_add_u32 {vr(vSo)}, {SCR}, {vr(vSo)}")
    a(f"s_lshl_b32 s7, s{sC}, 7")
    a(f"v_add_u32 {vr(T1)}, s7, {vr(T1)}")
    a(f"s_and_b32 s7, s{sW}, 1")
    a("s_lshl_b32 s7, s7, 5")
    a(f"s_lshl_b32 s8, s{sCT}, 6")
    a("s_add_u32 s7, s7, s8")
    a(f"v_and_b32 {vr(T0)}, 31, {vr(vL)}")
    a(f"v_add_u32 {vr(T0)}, s7, {vr(T0)}")
    a(f"v_lshl_add_u32 {vr(T1)}, {vr(T1)}, 9, {vr(T0)}")
    a(f"v_lshlrev_b32 {vr(vXo)}, 1, {vr(T1)}")
    a(f"v_lshlrev_b32 {vr(vOo)}, 2, {vr(T1)}")
    a(f"v_lshlrev_b32 {vr(T0)}, 1, {vr(T0)}")
    a(f"global_load_ushort {vr(vDk)}, {vr(T0)}, s[32:33]")
    for ii in range(8):
        ro = 8 * (ii >> 2) + (ii & 3)
        if ro * 1024 < 4096:
            a(f"buffer_load_ushort {vr(XV+ii)}, {vr(vXo)}, s[{SX}:{SX+3}], 0 offen offset:{ro*1024}")
        else:
            a(f"s_mov_b32 s9, {ro*1024}")
            a(f"buffer_load_ushort {vr(XV+ii)}, {vr(vXo)}, s[{SX}:{SX+3}], s9 offen")
    run(18)
    a(f"s_mov_b32 s{SP1+2}, 0")
    a(f"s_mov_b32 s{SP2+2}, 0")
    run(22)
    stamp(a)
    a("s_waitcnt vmcnt(0) lgkmcnt(0)")
    a("s_barrier")
    a(f"s_lshl_b32 s6, s{sW}, 12")
    a(f"v_lshl_add_u32 {vr(T0)}, {vr(vL)}, 4, s6")
    a(f"s_xor_b32 s7, s{sW}, 4")
    a("s_lshl_b32 s7, s7, 12")
    a(f"v_lshl_add_u32 {vr(T1)}, {vr(vL)}, 4, s7")
    a.flush()
    a(f"s_cmp_eq_u32 s{sH}, 1")
    a("s_cbranch_scc1 RED_H1")
    for k, r in enumerate((AF+8, AF+12, AY+8, AY+12)):
        a(f"ds_write_b128 {vr(T0)}, {vr(r,4)} offset:{1024*k}")
    a("s_branch RED_X")
    a("RED_H1:")
    for k, r in enumerate((AF, AF+4, AY, AY+4)):
        a(f"ds_write_b128 {vr(T0)}, {vr(r,4)} offset:{1024*k}")
    for k in range(8):
        a(f"v_mov_b32 {vr(AF+k)}, {vr(AF+8+k)}")
        a(f"v_mov_b32 {vr(AY+k)}, {vr(AY+8+k)}")
    a("RED_X:")
    a("s_waitcnt lgkmcnt(0)")
    a("s_barrier")
    RB = 160
    for k in range(4):
        a(f"ds_read_b128 {vr(RB+4*k,4)}, {vr(T1)} offset:{1024*k}")
    STt = 176
    a(f"ds_read_b128 {vr(STt,4)}, {vr(vSo)}")
    a(f"ds_read_b128 {vr(STt+4,4)}, {vr(vSo)} offset:32")
    a(f"ds_read_b128 {vr(STt+8,4)}, {vr(vSo)} offset:512")
    a(f"ds_read_b128 {vr(STt+12,4)}, {vr(vSo)} offset:544")
    a("s_waitcnt lgkmcnt(4)")
    for k in range(8):
        a(f"v_add_f32 {vr(AF+k)}, {vr(AF+k)}, {vr(RB+k)}")
        a(f"v_add_f32 {vr(AY+k)}, {vr(AY+k)}, {vr(RB+8+k)}")
    Fv = list(range(AF, AF+8)); Tm = list(range(64, 72))
    for s in silu_ops(Fv, Tm): a(s)
    for v in Fv: a(f"v_cvt_pk_bf16_f32 {vr(v)}, 0, {vr(v)}")
    a("s_waitcnt vmcnt(0) lgkmcnt(0)")
    a(f"v_lshlrev_b32 {vr(vDk)}, 16, {vr(vDk)}")
    for ii in range(8):
        x = XV + ii; t = 64 + ii; nm = STt + 8 + ii; rs = STt + ii
        a(f"v_lshlrev_b32 {vr(x)}, 16, {vr(x)}")
        a(f"v_add_f32 {vr(t)}, {vr(x)}, {vr(nm)}")
        a(f"v_cvt_pk_bf16_f32 {vr(t)}, 0, {vr(t)}")
        a(f"v_mul_f32 {vr(t)}, {vr(t)}, {vr(rs)}")
        a(f"v_cvt_pk_bf16_f32 {vr(t)}, 0, {vr(t)}")
        a(f"v_mul_f32 {vr(t)}, {vr(t)}, {vr(vDk)}")
        a(f"v_cvt_pk_bf16_f32 {vr(t)}, 0, {vr(t)}")
        a(f"v_fma_f32 {vr(t)}, 2.0, {vr(AY+ii)}, {vr(t)}")
        a(f"v_mul_f32 {vr(t)}, {vr(t)}, {vr(AF+ii)}")
        a(f"v_add_f32 {vr(t)}, {vr(t)}, {vr(x)}")
        ro = 8 * (ii >> 2) + (ii & 3)
        if ro * 2048 < 4096:
            a(f"buffer_store_dword {vr(t)}, {vr(vOo)}, s[{SO}:{SO+3}], 0 offen offset:{ro*2048}")
        else:
            a(f"s_mov_b32 s9, {ro*2048}")
            a(f"buffer_store_dword {vr(t)}, {vr(vOo)}, s[{SO}:{SO+3}], s9 offen")
    stamp(a)
    if STAMPS:
        a("s_waitcnt vmcnt(0)")
        stamp(a)
        a(f"s_lshl_b32 s6, s2, 3")
        a(f"s_add_u32 s6, s6, s{sW}")
        a("s_lshl_b32 s6, s6, 8")
        a(f"s_add_u32 s6, s6, {WS_ST}")
        a(f"v_lshlrev_b32 {vr(T0)}, 2, {vr(vL)}")
        a(f"buffer_store_dword {vr(VST)}, {vr(T0)}, s[{SWS}:{SWS+3}], s6 offen")
        a(f"s_add_u32 s6, s6, 0x80000")
        a(f"buffer_store_dword {vr(248)}, {vr(T0)}, s[{SWS}:{SWS+3}], s6 offen")
    a("K_END:")
    a("s_endpgm")

    def rawlabel(n):
        a.hist = []
        a.lines.append(n + ":")
    for ty in "FY":
        for hf in range(2):
            cur, nxt = hf, 1 - hf
            rawlabel(f"P{ty}{hf}")
            a(f"s_mov_b32 s6, s{sSL}")
            a(f"s_add_u32 s{sSL}, s{sSL}, {2*SLOT}")
            a(f"s_and_b32 s{sSL}, s{sSL}, {SLOT*NSLOT-1}")
            for k in range(3):
                a(f"v_add_u32 {vr(vA[k])}, s{sSL}, {vr(vR[hf][k])}")
            a(f"s_add_u32 s7, s{sM1}, s6")
            a(f"s_add_u32 s{sIT}, s{sIT}, 1")
            a("s_waitcnt vmcnt(8) lgkmcnt(0)")
            a("s_barrier")
            if STAMPS:
                a("s_memtime s[98:99]")
                a("s_waitcnt lgkmcnt(0)")
                a(f"s_mov_b32 m0, s{sIT}")
                a("s_nop 0")
                a(f"v_writelane_b32 {vr(248)}, s98, m0")
            rl = rd_list(nxt, vA)
            for k in range(4):
                if ty == "F":
                    a(f"v_mfma_f32_32x32x16_bf16 {vr(AF,16)}, {vr(F1(cur,k),4)}, {vr(F2(cur,k),4)}, {vr(AF,16)}")
                else:
                    a(f"v_mfma_f32_32x32x16_bf16 {vr(AY,16)}, {vr(F2(cur,k),4)}, {vr(F1(cur,k),4)}, {vr(AY,16)}")
                for s in rl[3*k:3*k+3]: a(s)
                if k & 1 == 0:
                    a(f"s_add_u32 m0, s7, {8192 + 16384*(k>>1)}")
                    a(f"buffer_load_dwordx4 {vr(vP2)}, s[{SP2}:{SP2+3}], s{sP2s} offen sc1 lds")
                    a(f"s_add_u32 s{sP2s}, s{sP2s}, s{sP2st}")
                else:
                    a(f"s_add_u32 m0, s7, {16384*(k>>1)}")
                    a(f"buffer_load_dwordx4 {vr(vP1)}, s[{SP1}:{SP1+3}], s{sP1s} offen sc1 lds")
                    a(f"s_add_u32 s{sP1s}, s{sP1s}, s{sP1st}")
            a(f"s_cmp_lt_u32 s{sIT}, s{sSTOP}")
            if hf == 0:
                a(f"s_cbranch_scc0 PRET")
            else:
                a(f"s_cbranch_scc1 P{ty}0")
                if ty == "F": a("s_branch PRET")
    rawlabel("PRET")
    a("s_nop 7")
    a("s_nop 7")
    a(f"s_setpc_b64 s[{sRET}:{sRET+1}]")
    a("CODE_END:")
    return a

def gen_pre():
    a = Asm()
    a("s_cmp_ge_u32 s2, 17")
    a("s_cbranch_scc1 PRE_END")
    a("s_load_dwordx2 s[4:5], s[0:1], 112")
    a("v_lshlrev_b32 v1, 4, v0")
    a("s_lshl_b32 s6, s2, 12")
    a(f"s_add_u32 s6, s6, {WS_E}")
    for k in range(4): a(f"v_mov_b32 v{2+k}, 0")
    a("s_waitcnt lgkmcnt(0)")
    srd(a, 8, 4, 5, WS_SIZE)
    a("buffer_store_dwordx4 v[2:5], v1, s[8:11], s6 offen")
    a("PRE_END:")
    a("s_endpgm")
    return a

def kd(name, vgpr, accum, sgpr=102):
    return f""".section .rodata,"a"
.p2align 6
.amdhsa_kernel {name}
  .amdhsa_next_free_vgpr {vgpr}
  .amdhsa_next_free_sgpr {sgpr}
  .amdhsa_accum_offset {accum}
  .amdhsa_group_segment_fixed_size 0
  .amdhsa_kernarg_size 120
  .amdhsa_user_sgpr_count 2
  .amdhsa_user_sgpr_kernarg_segment_ptr 1
  .amdhsa_system_sgpr_workgroup_id_x 1
.end_amdhsa_kernel
"""

def main(out):
    ref = open("cdna_kernels/" + NAME + ".s.ref").read().split("\n")
    hdr = [l for l in ref if l.startswith(";") and "@launch" not in l and "Override" not in l and "grid=ceil" not in l]
    k = gen()
    kn = NAME + "_kernel"
    s = "\n".join(hdr) + "\n"
    s += "; @launch grid=(256,1,1) block=(512,1,1) lds=163840\n"
    s += '.amdgcn_target "amdgcn-amd-amdhsa--gfx950"\n.text\n'
    s += f".globl {kn}\n.p2align 8\n.type {kn},@function\n{kn}:\nmain_kernel:\n"
    s += k.text()
    s += kd(kn, 256, 256)
    open(out, "w").write(s)
    print("instrs", k.count, "bytes", len(s), "stamps", _nst[0])

if __name__ == "__main__":
    if "--stamps" in sys.argv:
        STAMPS = True; sys.argv.remove("--stamps")
    main(sys.argv[1] if len(sys.argv) > 1 else "g1.s")
```

```python
import sys, struct, os
from asmlib import Asm

NAME = "recurrent_scan__ssm_conv_s5__dense_activation_silu__prompt"
WS_H1 = 0
WS_HH = 0x800000
WS_E = 0xD00000
WS_F1 = 0xD10000
WS_ST = 0xE00000
WS_SIZE = 0xF00000
LOG2E = 0x3fb8aa3b
INV2PI = "0.15915494309189535"
SLOT = 16384
NSLOT = 8
R2 = 131072
SCR = R2
SC_NM, SC_RS, SC_SD, SC_CS, SC_LP, SC_WT, SC_FC = 0, 512, 1024, 2048, 4096, 8192, 12288
TOUCH = os.environ.get("TOUCH", "BCDE")
EPI = int(os.environ.get("EPI", 0))
EV_TE = int(os.environ.get("EV_TE", 2))

def vr(b, n=1):
    return f"v{b}" if n == 1 else f"v[{b}:{b+n-1}]"
def flit(x):
    return hex(struct.unpack('<I', struct.pack('<f', float(x)))[0])

STAMPS = False
VST = 29
_nst = [0]
def stamp(a, tag=None):
    if not STAMPS: return
    a.flush()
    a("s_memtime s[98:99]")
    a("s_waitcnt lgkmcnt(0)")
    a(f"v_writelane_b32 {vr(VST)}, s98, {_nst[0]}")
    _nst[0] += 1

class Rec:
    def __init__(self): self.l = []
    def __call__(self, s): self.l.append(s)

def set_exec(a, m):
    a(f"s_mov_b32 exec_lo, {hex(m & 0xffffffff)}")
    a(f"s_mov_b32 exec_hi, {hex((m >> 32) & 0xffffffff)}")

def srd(a, s, lo, hi, size):
    a(f"s_mov_b32 s{s}, s{lo}")
    a(f"s_mov_b32 s{s+1}, s{hi}")
    a(f"s_mov_b32 s{s+2}, {size}")
    a(f"s_mov_b32 s{s+3}, 0x20000")

def cexp(a, d, z, n, t, di=None):
    if di is None: di = d + 1
    if n is None:
        a(f"v_exp_f32 {vr(t)}, {vr(z)}")
        a(f"v_fract_f32 {vr(t+1)}, {vr(z+1)}")
    else:
        a(f"v_mul_f32 {vr(t)}, {n}, {vr(z)}")
        a(f"v_mul_f32 {vr(t+1)}, {n}, {vr(z+1)}")
        a(f"v_exp_f32 {vr(t)}, {vr(t)}")
        a(f"v_fract_f32 {vr(t+1)}, {vr(t+1)}")
    a(f"v_cos_f32 {vr(d)}, {vr(t+1)}")
    a(f"v_sin_f32 {vr(di)}, {vr(t+1)}")
    if di == d + 1 and d % 2 == 0:
        a(f"v_pk_mul_f32 {vr(d,2)}, {vr(d,2)}, {vr(t,2)} op_sel:[0,0] op_sel_hi:[1,0]")
    else:
        a(f"v_mul_f32 {vr(d)}, {vr(d)}, {vr(t)}")
        a(f"v_mul_f32 {vr(di)}, {vr(di)}, {vr(t)}")

def red4(a, v, t):
    a(f"v_mov_b32 {vr(t)}, {vr(v)}")
    a(f"v_permlane16_swap_b32 {vr(v)}, {vr(t)}")
    a(f"v_add_f32 {vr(v)}, {vr(v)}, {vr(t)}")
    a(f"v_mov_b32 {vr(t)}, {vr(v)}")
    a(f"v_permlane32_swap_b32 {vr(v)}, {vr(t)}")
    a(f"v_add_f32 {vr(v)}, {vr(v)}, {vr(t)}")

def cmad(a, d, l, p, c, tmp=None):
    t = d if tmp is None else tmp
    if c is None:
        a(f"v_pk_mul_f32 {vr(t,2)}, {vr(l,2)}, {vr(p,2)} op_sel:[0,0] op_sel_hi:[0,1]")
    else:
        a(f"v_pk_fma_f32 {vr(t,2)}, {vr(l,2)}, {vr(p,2)}, {vr(c,2)} op_sel:[0,0,0] op_sel_hi:[0,1,1]")
    a(f"v_fma_f32 {vr(t)}, -{vr(l+1)}, {vr(p+1)}, {vr(t)}")
    a(f"v_fma_f32 {vr(d+1)}, {vr(l+1)}, {vr(p)}, {vr(t+1)}")
    if tmp is not None:
        a(f"v_mov_b32 {vr(d)}, {vr(t)}")

def pkf(d, s0, s1, s2, neg=False):
    n = " neg_lo:[1,0,0] neg_hi:[1,0,0]" if neg else ""
    return f"v_pk_fma_f32 {vr(d,2)}, {vr(s0,2)}, {vr(s1,2)}, {vr(s2,2)} op_sel:[0,0,0] op_sel_hi:[0,1,1]{n}"
def pkm(d, s0, s1, neg=False):
    n = " neg_lo:[1,0] neg_hi:[1,0]" if neg else ""
    return f"v_pk_mul_f32 {vr(d,2)}, {vr(s0,2)}, {vr(s1,2)} op_sel:[0,0] op_sel_hi:[0,1]{n}"

def silu_ops(vals, tmp):
    o = []
    for v in vals: o.append(f"v_cvt_pk_bf16_f32 {vr(v)}, 0, {vr(v)}")
    for v, t in zip(vals, tmp): o.append(f"v_mul_f32 {vr(t)}, 0xbfb8aa3b, {vr(v)}")
    for v, t in zip(vals, tmp): o.append(f"v_exp_f32 {vr(t)}, {vr(t)}")
    for v, t in zip(vals, tmp): o.append(f"v_add_f32 {vr(t)}, 1.0, {vr(t)}")
    for v, t in zip(vals, tmp): o.append(f"v_rcp_f32 {vr(t)}, {vr(t)}")
    for v, t in zip(vals, tmp): o.append(f"v_mul_f32 {vr(v)}, {vr(v)}, {vr(t)}")
    return o

def merge(a, main, fill, start=0):
    nm = sum(1 for m in main if m.startswith("v_mfma")) - start
    fi = 0; seen = -start
    def put(x):
        if isinstance(x, (tuple, list)):
            for y in x: a(y)
        else: a(x)
    for m in main:
        a(m)
        if m.startswith("v_mfma"):
            seen += 1
            if seen <= 0: continue
            tgt = (len(fill) * seen) // nm
            while fi < tgt:
                put(fill[fi]); fi += 1
    while fi < len(fill):
        put(fill[fi]); fi += 1

def gen():
    a = Asm()
    XA = lambda fa, kb: 128 + (fa * 16 + kb) * 4
    FB = lambda n: 64 + 4 * (n & 7)
    SR, SI = 96, 104
    ET = 112
    PK = 120
    CSF = 124
    UR = lambda s_: 32 + 2 * s_
    UI = lambda s_: 40 + 2 * s_
    vL, vI, vQ = 1, 2, 3
    T0, T1, T2, T3, T4, T5 = 4, 5, 6, 7, 8, 9
    vXB = [10, 11, 12, 13]
    vB0, vB1, vB2, vTN = 14, 15, 16, 17
    vFP, vFF, vD0, vD, vW1, vXD = 18, 19, 20, 21, 22, 23
    vRDY = 61
    vNM, vRS, vRL, vSD = [24, 26], [25, 27], [28, 30], [60, 62]
    vH1 = 31
    vZ = 32
    vLr, vLi, vCr, vCi = 48, 50, 52, 54
    AEr, AEi, L4r, L4i = 49, 51, 53, 55
    vP = 22
    vPC = 34
    vONE = 56
    vPm = [60, 61, 62]
    L8, L32, LQ = 112, 114, 116
    LJt, L512t, LREt = 118, 120, 122
    LJ, L512, LRE = 10, 12, 20
    EB = [116, 118, 56, 58]
    sW, sC, sG = 3, 4, 5
    SX, SW1, SBD, SWS, SP1, SP2, SO = 48, 52, 56, 60, 64, 68, 72
    sRG, sH, sHH, sCT = 76, 77, 78, 79
    sWM = 88
    sRET = 96
    sJ, sFA = 100, 101
    VM = [90, 92, 94, 46]
    a("s_cmp_ge_u32 s2, 256")
    a("s_cbranch_scc1 K_END")
    a("s_load_dwordx16 s[16:31], s[0:1], 0")
    a("s_load_dwordx2 s[32:33], s[0:1], 64")
    a("s_load_dwordx8 s[36:43], s[0:1], 80")
    a("s_load_dwordx2 s[34:35], s[0:1], 112")
    a("s_getpc_b64 s[44:45]")
    a(f"v_lshlrev_b32 {vr(T0)}, 7, v0")
    a(f"v_min_u32 {vr(T0)}, CODE_END-main_kernel-64, {vr(T0)}")
    a(f"global_load_dword {vr(63)}, {vr(T0)}, s[44:45]")
    if STAMPS: a(f"v_mov_b32 {vr(VST)}, 0")
    stamp(a)
    a(f"v_lshrrev_b32 {vr(T0)}, 6, v0")
    a(f"v_readfirstlane_b32 s{sW}, {vr(T0)}")
    a(f"v_and_b32 {vr(vL)}, 63, v0")
    a(f"v_and_b32 {vr(vI)}, 15, v0")
    a(f"v_lshrrev_b32 {vr(vQ)}, 4, {vr(vL)}")
    a("s_and_b32 s6, s2, 6")
    a("s_lshl_b32 s6, s6, 1")
    a("s_lshr_b32 s7, s2, 3")
    a("s_and_b32 s7, s7, 3")
    a(f"s_add_u32 s{sC}, s6, s7")
    a(f"s_and_b32 s{sHH}, s2, 1")
    a(f"s_lshr_b32 s{sCT}, s2, 5")
    a(f"s_lshl_b32 s6, s{sHH}, 3")
    a(f"s_add_u32 s{sG}, s6, s{sCT}")
    a(f"s_and_b32 s{sRG}, s{sW}, 3")
    a(f"s_lshr_b32 s{sH}, s{sW}, 2")
    a(f"s_lshr_b32 s6, s{sCT}, 2")
    a(f"s_xor_b32 s{sFA}, s6, s{sH}")
    a(f"s_add_u32 s15, s{sW}, s{sCT}")
    a("s_and_b32 s15, s15, 3")
    a(f"v_lshlrev_b32 {vr(vXD)}, 4, {vr(vL)}")
    a(f"s_lshl_b32 s8, s{sC}, 7")
    a("s_lshl_b32 s7, s15, 5")
    a("s_add_u32 s8, s8, s7")
    a(f"s_lshl_b32 s7, s{sFA}, 2")
    a("s_add_u32 s8, s8, s7")
    a("s_lshl_b32 s8, s8, 10")
    a("s_lshl_b32 s9, s15, 14")
    a(f"s_lshl_b32 s7, s{sFA}, 16")
    a("s_add_u32 s9, s9, s7")
    a(f"s_lshl_b32 s6, s{sRG}, 2")
    a(f"v_xor_b32 {vr(vD0)}, s6, {vr(vL)}")
    a(f"v_lshlrev_b32 {vr(vD0)}, 4, {vr(vD0)}")
    a(f"s_lshl_b32 s13, s{sG}, 5")
    a("s_add_u32 s13, s13, s6")
    a("s_lshl_b32 s13, s13, 10")
    a(f"s_lshl_b32 s14, s{sRG}, 12")
    a(f"s_lshl_b32 s15, s{sH}, 14")
    a("s_waitcnt lgkmcnt(0)")
    srd(a, SX, 16, 17, 2097152)
    srd(a, SWS, 34, 35, WS_SIZE)
    a(f"s_cmp_lg_u32 s{sG}, 0")
    a("s_cbranch_scc1 NOZERO")
    a(f"s_lshl_b32 s6, s{sC}, 12")
    a(f"s_lshl_b32 s7, s{sW}, 9")
    a("s_add_u32 s6, s6, s7")
    a(f"s_add_u32 s6, s6, {WS_E}")
    a(f"v_lshlrev_b32 {vr(T1)}, 3, {vr(vL)}")
    a(f"v_mov_b32 {vr(T2)}, 0")
    a(f"v_mov_b32 {vr(T3)}, 0")
    a(f"buffer_store_dwordx2 {vr(T2,2)}, {vr(T1)}, s[{SWS}:{SWS+3}], s6 offen sc1")
    a(f"s_cmp_gt_u32 s{sW}, 0")
    a("s_cbranch_scc1 NOZERO")
    a(f"s_lshl_b32 s6, s{sC}, 7")
    a(f"s_add_u32 s6, s6, {WS_F1}")
    a("s_mov_b64 exec, 0xff")
    a(f"buffer_store_dwordx2 {vr(T2,2)}, {vr(T1)}, s[{SWS}:{SWS+3}], s6 offen sc1")
    a("s_mov_b64 exec, -1")
    a("NOZERO:")
    for n in range(16):
        a(f"v_xor_b32 {vr(vD)}, {n<<4}, {vr(vXD)}")
        a(f"s_add_u32 m0, s9, {n*1024}")
        a(f"s_add_u32 s10, s8, {(16*(n>>3) + 8*((n&7)>>2) + (n&3))*1024}")
        a(f"buffer_load_dwordx4 {vr(vD)}, s[{SX}:{SX+3}], s10 offen lds")
    srd(a, SBD, 22, 23, 524288)
    a("s_add_u32 s6, s14, s15")
    a("s_add_u32 s7, s13, s15")
    for n in range(4):
        a(f"v_xor_b32 {vr(vD)}, {n<<4}, {vr(vD0)}")
        a(f"s_add_u32 m0, s6, {R2 + 1024*n}")
        a(f"s_add_u32 s10, s7, {1024*n}")
        a(f"buffer_load_dwordx4 {vr(vD)}, s[{SBD}:{SBD+3}], s10 offen lds")
    srd(a, SW1, 36, 37, 1835008)
    srd(a, SBD, 24, 25, 524288)
    def bim(hf, n):
        return (f"v_xor_b32 {vr(vD)}, {n<<4}, {vr(vD0)}",
                f"s_add_u32 m0, s14, {16384*hf + 1024*n}",
                f"s_add_u32 s10, s13, {16384*hf + 1024*n}",
                f"buffer_load_dwordx4 {vr(vD)}, s[{SBD}:{SBD+3}], s10 offen lds")
    a(f"s_lshl_b32 s6, s{sG}, 6")
    a(f"s_lshl_b32 s7, s{sH}, 5")
    a("s_add_u32 s6, s6, s7")
    a(f"v_lshl_add_u32 {vr(T1)}, {vr(vI)}, 1, s6")
    a(f"global_load_ushort {vr(vPm[0])}, {vr(T1)}, s[18:19]")
    a(f"global_load_ushort {vr(vPm[1])}, {vr(T1)}, s[20:21]")
    a(f"global_load_ushort {vr(vPm[2])}, {vr(T1)}, s[30:31]")
    a(f"s_lshr_b32 s{sJ}, s2, 3")
    a(f"s_lshr_b32 s6, s{sW}, 1")
    a("s_and_b32 s6, s6, 1")
    a("s_lshl_b32 s6, s6, 2")
    a(f"v_or_b32 {vr(T0)}, s6, {vr(vQ)}")
    a(f"v_lshrrev_b32 {vr(T1)}, 1, {vr(vI)}")
    a(f"v_xor_b32 {vr(T0)}, {vr(T0)}, {vr(T1)}")
    a(f"v_cmp_ne_u32 s[{sWM}:{sWM+1}], 7, {vr(T0)}")
    a(f"v_lshlrev_b32 {vr(T0)}, 5, {vr(T0)}")
    a(f"v_and_b32 {vr(T1)}, 1, {vr(vI)}")
    a(f"v_lshl_add_u32 {vr(T0)}, {vr(T1)}, 4, {vr(T0)}")
    a("s_movk_i32 s6, 3584")
    a(f"v_mul_lo_u32 {vr(T1)}, {vr(vQ)}, s6")
    a(f"v_add_u32 {vr(T0)}, {vr(T0)}, {vr(T1)}")
    a(f"s_mul_i32 s6, s{sG}, 224")
    a(f"v_add_u32 {vr(vW1)}, s6, {vr(T0)}")
    a(f"s_mul_i32 s11, s{sRG}, 14336")
    a(f"s_lshl_b32 s12, s{sRG}, 10")
    a(f"s_mul_i32 s8, s{sW}, 14336")
    a(f"s_lshl_b32 s9, s{sW}, 10")
    def w1dma(kb, hf, own=False):
        lb = 8192 * kb + (R2 if kb < 4 else 0)
        if own: l_, g_, hf = 9, 8, 0
        else: l_, g_ = 12, 11
        return (f"s_add_u32 m0, s{l_}, {lb + 4096*hf}",
                f"s_add_u32 s10, s{g_}, {8*14336*kb + 4*14336*hf}",
                f"s_mov_b64 exec, s[{sWM}:{sWM+1}]",
                f"buffer_load_dwordx4 {vr(vW1)}, s[{SW1}:{SW1+3}], s10 offen lds",
                "s_mov_b64 exec, -1")
    a(f"s_lshl_b32 s6, s{sRG}, 4")
    a(f"v_add_u32 {vr(T0)}, s6, {vr(vI)}")
    a(f"v_lshlrev_b32 {vr(T0)}, 10, {vr(T0)}")
    for j in range(4):
        a(f"v_or_b32 {vr(T1)}, {4*j}, {vr(vQ)}")
        a(f"v_xor_b32 {vr(T1)}, {vr(T1)}, {vr(vI)}")
        a(f"v_lshl_add_u32 {vr(vXB[j])}, {vr(T1)}, 4, {vr(T0)}")
    for k in range(4): a(f"v_mov_b32 {vr(vONE+k)}, 0x3f803f80")
    a(f"v_bfe_u32 {vr(T0)}, {vr(vL)}, 2, 2")
    a(f"v_lshl_add_u32 {vr(T1)}, {vr(vQ)}, 3, {vr(T0)}")
    a(f"v_lshlrev_b32 {vr(T1)}, 8, {vr(T1)}")
    a(f"v_and_b32 {vr(T2)}, 3, {vr(vL)}")
    a(f"v_lshl_add_u32 {vr(vFP)}, {vr(T2)}, 3, {vr(T1)}")
    a(f"v_and_b32 {vr(T2)}, 1, {vr(vQ)}")
    a(f"v_lshl_add_u32 {vr(T0)}, {vr(T2)}, 2, {vr(T0)}")
    a(f"v_lshlrev_b32 {vr(vFF)}, 5, {vr(T0)}")
    a(f"v_lshrrev_b32 {vr(T0)}, 2, {vr(vI)}")
    a(f"v_lshlrev_b32 {vr(T0)}, 3, {vr(T0)}")
    a(f"v_and_b32 {vr(T1)}, 3, {vr(vI)}")
    a(f"v_add_u32 {vr(T0)}, {vr(T0)}, {vr(T1)}")
    a(f"v_lshl_add_u32 {vr(T0)}, {vr(T2)}, 2, {vr(T0)}")
    a(f"v_lshlrev_b32 {vr(T0)}, 5, {vr(T0)}")
    a(f"v_lshrrev_b32 {vr(T3)}, 1, {vr(vQ)}")
    a(f"v_lshl_add_u32 {vr(vH1)}, {vr(T3)}, 4, {vr(T0)}")
    a(f"v_cmp_eq_u32 s[90:91], 1, {vr(T1)}")
    a(f"v_cmp_eq_u32 s[92:93], 2, {vr(T1)}")
    a(f"v_cmp_eq_u32 s[94:95], 3, {vr(T1)}")
    a(f"v_lshrrev_b32 {vr(T1)}, 2, {vr(vI)}")
    a(f"v_cmp_eq_u32 s[46:47], {vr(T1)}, {vr(vQ)}")
    stamp(a)

    def stats(fa):
        AS, AQ = 96, 100
        for kb in range(16):
            c = "0" if kb == 0 else vr(AS, 4)
            a(f"v_mfma_f32_16x16x32_bf16 {vr(AS,4)}, {vr(vONE,4)}, {vr(XA(fa,kb),4)}, {c}")
        for kb in range(16):
            c = "0" if kb == 0 else vr(AQ, 4)
            a(f"v_mfma_f32_16x16x32_bf16 {vr(AQ,4)}, {vr(XA(fa,kb),4)}, {vr(XA(fa,kb),4)}, {c}")
            if kb == 3:
                a(f"v_mul_f32 {vr(T4)}, 0xbb000000, {vr(AS)}")
                a(f"v_cvt_pk_bf16_f32 {vr(vNM[0])}, 0, {vr(T4)}")
        a(f"v_cndmask_b32 {vr(T0)}, {vr(AQ)}, {vr(AQ+1)}, s[90:91]")
        a(f"v_cndmask_b32 {vr(T0)}, {vr(T0)}, {vr(AQ+2)}, s[92:93]")
        a(f"v_cndmask_b32 {vr(T0)}, {vr(T0)}, {vr(AQ+3)}, s[94:95]")
        a(f"v_cndmask_b32 {vr(T0)}, 0, {vr(T0)}, s[46:47]")
        red4(a, T0, T1)
        a(f"v_mul_f32 {vr(T0)}, 0x3b000000, {vr(T0)}")
        a(f"v_fma_f32 {vr(T0)}, -{vr(T4)}, {vr(T4)}, {vr(T0)}")
        a(f"v_max_f32 {vr(T0)}, 0, {vr(T0)}")
        a(f"v_cvt_pk_bf16_f32 {vr(T0)}, 0, {vr(T0)}")
        a(f"v_add_f32 {vr(T0)}, 0x3727c5ac, {vr(T0)}")
        a(f"v_cvt_pk_bf16_f32 {vr(T0)}, 0, {vr(T0)}")
        a(f"v_sqrt_f32 {vr(T0)}, {vr(T0)}")
        a(f"v_cvt_pk_bf16_f32 {vr(vRL[0])}, 0, {vr(T0)}")
        a(f"v_rcp_f32 {vr(vRS[0])}, {vr(vRL[0])}")

    def call(label):
        a.flush()
        a(f"s_call_b64 s[{sRET}:{sRET+1}], {label}")
        a.flush()

    def read_x(fa):
        for kb in range(16):
            a(f"ds_read_b128 {vr(XA(fa,kb),4)}, {vr(vXB[kb&3])} offset:{(kb>>2)*256}")

    a(f"s_cmp_lg_u32 s{sFA}, 0")
    a("s_cbranch_scc1 B1W")
    a("s_waitcnt vmcnt(7)")
    a("B1W:")
    a("s_barrier")
    stamp(a)
    read_x(0)
    for j in range(4): a(f"v_add_u32 {vr(vXB[j])}, 0x10000, {vr(vXB[j])}")
    a("s_waitcnt lgkmcnt(0)")
    a("s_barrier")
    a(f"s_cmp_lg_u32 s{sH}, 0")
    a("s_cbranch_scc1 H1_A")
    stats(0)
    a("s_waitcnt vmcnt(0)")
    a("s_branch X_A")
    a("H1_A:")
    for hf in range(2):
        for n in range(4):
            for s in bim(hf, n): a(s)
    for kb in range(4, 8):
        for hf in range(2):
            for s in w1dma(kb, hf): a(s)
    a("s_waitcnt vmcnt(16)")
    a("X_A:")
    stamp(a)
    a("s_barrier")
    read_x(1)
    a(f"s_lshl_b32 s7, s{sRG}, 14")
    a("s_sub_u32 s6, s15, s7")
    a(f"s_add_u32 s6, s6, {R2 - 65536}")
    for j in range(4): a(f"v_add_u32 {vr(vXB[j])}, s6, {vr(vXB[j])}")
    a("s_waitcnt lgkmcnt(0)")
    a("s_barrier")
    stamp(a)
    a(f"s_cmp_lg_u32 s{sH}, 0")
    a("s_cbranch_scc1 H1_B")
    a(f"s_lshl_b32 s6, s{sC}, 2")
    a(f"v_mov_b32 {vr(T1)}, s6")
    a(f"v_mov_b32 {vr(T2)}, 1")
    a(f"s_or_b32 s6, s{sW}, s{sG}")
    a("s_cmp_eq_u32 s6, 0")
    a("s_cselect_b32 exec_lo, 1, 0")
    a("s_mov_b32 exec_hi, 0")
    a(f"global_store_dword {vr(T1)}, {vr(T2)}, s[42:43] sc1")
    a("s_mov_b64 exec, -1")
    for kb in range(8, 16):
        for hf in range(2):
            for s in w1dma(kb, hf): a(s)
    a("s_branch X_B")
    a("H1_B:")
    stats(1)
    a("X_B:")
    stamp(a)
    def brd(kb):
        if kb >= 16:
            return f"ds_read_b128 {vr(FB(kb),4)}, {vr(vB0 + (kb&3))}"
        return f"ds_read_b128 {vr(FB(kb),4)}, {vr(vXB[kb&3])} offset:{(kb>>2)*256}"
    def ssm_main(ri):
        S = (SR, SI)[ri]
        m = [brd(kb) for kb in range(4)]
        for kb in range(20):
            if kb + 4 < 20: m.append(brd(kb + 4))
            m.append(f"s_waitcnt lgkmcnt({min(4, 19-kb)})")
            if kb < 16:
                for fa in range(2):
                    c = "0" if kb == 0 else vr(S + 4*fa, 4)
                    m.append(f"v_mfma_f32_16x16x32_bf16 {vr(S+4*fa,4)}, {vr(XA(fa,kb),4)}, {vr(FB(kb),4)}, {c}")
            else:
                c = "0" if kb == 16 else vr(CSF, 4)
                m.append(f"v_mfma_f32_16x16x32_bf16 {vr(CSF,4)}, {vr(vONE,4)}, {vr(FB(kb),4)}, {c}")
        return m
    a(f"s_lshl_b32 s6, s{sRG}, 8")
    for j in range(4): a(f"v_add_u32 {vr(vB0+j)}, s6, {vr(vXB[j])}")
    p = Rec()
    p(f"v_lshlrev_b32 {vr(vPm[0])}, 16, {vr(vPm[0])}")
    p(f"v_lshlrev_b32 {vr(vPm[1])}, 16, {vr(vPm[1])}")
    p(f"v_lshlrev_b32 {vr(T0)}, 16, {vr(vPm[2])}")
    p(f"v_mul_f32 {vr(T0)}, {hex(LOG2E)}, {vr(T0)}")
    p(f"v_exp_f32 {vr(T0)}, {vr(T0)}")
    p(f"v_cvt_pk_bf16_f32 {vr(T0)}, 0, {vr(T0)}")
    p(f"v_mul_f32 {vr(vZ)}, {vr(T0)}, {vr(vPm[0])}")
    p(f"v_mul_f32 {vr(vZ+1)}, {vr(T0)}, {vr(vPm[1])}")
    p(f"v_mul_f32 {vr(vZ)}, {hex(LOG2E)}, {vr(vZ)}")
    p(f"v_mul_f32 {vr(vZ+1)}, {INV2PI}, {vr(vZ+1)}")
    cexp(p, vLr, vZ, None, T0, vLi)
    p(f"v_add_f32 {vr(T0)}, -1.0, {vr(vLr)}")
    p(f"v_mul_f32 {vr(T1)}, {vr(vPm[0])}, {vr(vPm[0])}")
    p(f"v_fmac_f32 {vr(T1)}, {vr(vPm[1])}, {vr(vPm[1])}")
    p(f"v_rcp_f32 {vr(T1)}, {vr(T1)}")
    p(f"v_mul_f32 {vr(vCr)}, {vr(T0)}, {vr(vPm[0])}")
    p(f"v_fmac_f32 {vr(vCr)}, {vr(vLi)}, {vr(vPm[1])}")
    p(f"v_mul_f32 {vr(vCi)}, {vr(vLi)}, {vr(vPm[0])}")
    p(f"v_fma_f32 {vr(vCi)}, -{vr(T0)}, {vr(vPm[1])}, {vr(vCi)}")
    p(f"v_mul_f32 {vr(vCr)}, {vr(vCr)}, {vr(T1)}")
    p(f"v_mul_f32 {vr(vCi)}, {vr(vCi)}, {vr(T1)}")
    cexp(p, L4r, vZ, "4.0", T0, L4i)
    cexp(p, L8, vZ, flit(8), T0)
    cexp(p, L32, vZ, flit(32), T0)
    p(f"v_lshlrev_b32 {vr(T4)}, 3, {vr(vQ)}")
    p(f"v_cvt_f32_u32 {vr(T4)}, {vr(T4)}")
    cexp(p, LQ, vZ, vr(T4), T0)
    merge(a, ssm_main(0), p.l)
    a(f"v_mov_b32 {vr(vPC)}, {vr(CSF)}")
    for j in range(4):
        a(f"v_add_u32 {vr(vXB[j])}, {-R2 & 0xffffffff}, {vr(vXB[j])}")
        a(f"v_add_u32 {vr(vB0+j)}, {-R2 & 0xffffffff}, {vr(vB0+j)}")
    a(f"s_cmp_eq_u32 s{sH}, 0")
    a("s_cbranch_scc1 B5W")
    a("s_waitcnt vmcnt(8)")
    a("B5W:")
    a("s_barrier")
    stamp(a)
    p = Rec()
    for kb in range(4): p(w1dma(kb, 0, own=True))
    p((f"v_lshlrev_b32 {vr(T2)}, 2, {vr(vI)}", f"global_load_dword {vr(vRDY)}, {vr(T2)}, s[42:43] sc1"))
    p(f"s_lshl_b32 s6, s{sRG}, 5")
    p(f"v_lshl_add_u32 {vr(T4)}, {vr(vQ)}, 3, s6")
    p(f"v_cvt_f32_u32 {vr(T4)}, {vr(T4)}")
    cexp(p, LJt, vZ, vr(T4), T0)
    cexp(p, L512t, vZ, flit(512), T0)
    p(f"s_sub_u32 s6, s{sC}, 1")
    p(f"v_sub_u32 {vr(T4)}, s6, {vr(vQ)}")
    for m_ in range(4):
        p(f"v_cmp_le_i32 s[{VM[m_]}:{VM[m_]+1}], {4*m_}, {vr(T4)}")
    p(f"v_and_b32 {vr(T4)}, 3, {vr(T4)}")
    p(f"v_lshlrev_b32 {vr(T4)}, 7, {vr(T4)}")
    p(f"v_cvt_f32_u32 {vr(T4)}, {vr(T4)}")
    cexp(p, LREt, vZ, vr(T4), T0)
    merge(a, ssm_main(1), p.l)
    a(f"v_mov_b32 {vr(vPC+1)}, {vr(CSF)}")
    for d, s_ in ((LJ, LJt), (L512, L512t), (LRE, LREt)):
        a(f"v_mov_b32 {vr(d)}, {vr(s_)}")
        a(f"v_mov_b32 {vr(d+1)}, {vr(s_+1)}")
    a(f"v_lshrrev_b32 {vr(T0)}, 2, {vr(vI)}")
    a(f"v_lshlrev_b32 {vr(T0)}, 3, {vr(T0)}")
    a(f"v_and_b32 {vr(T1)}, 3, {vr(vI)}")
    a(f"v_add_u32 {vr(T0)}, {vr(T0)}, {vr(T1)}")
    a(f"s_lshl_b32 s6, s{sRG}, 5")
    a(f"v_add_u32 {vr(T0)}, s6, {vr(T0)}")
    a(f"v_lshlrev_b32 {vr(T5)}, 2, {vr(T0)}")
    a(f"s_lshl_b32 s6, s{sH}, 4")
    a(f"v_add_u32 {vr(T0)}, s6, {vr(T5)}")
    a(f"s_lshl_b32 s6, s{sH}, 8")
    a(f"v_lshl_add_u32 {vr(T4)}, {vr(vI)}, 4, s6")
    a(f"s_lshl_b32 s6, s{sRG}, 2")
    a(f"v_add_u32 {vr(T1)}, s6, {vr(T4)}")
    sT, sST = 80, 82
    a(f"s_lshl_b32 s{sT}, s{sH}, 7")
    a(f"s_lshl_b32 s7, s{sRG}, 5")
    a(f"s_add_u32 s7, s7, s{sT}")
    a(f"v_xor_b32 {vr(vB0)}, s7, {vr(vFF)}")
    a(f"v_add_u32 {vr(vB0)}, {vr(vB0)}, {vr(vFP)}")
    a(f"v_add_u32 {vr(vB1)}, 0x10000, {vr(vB0)}")
    a(f"v_add_u32 {vr(vB2)}, 0x20000, {vr(vB0)}")
    a("s_waitcnt vmcnt(5)")
    a("s_barrier")
    stamp(a)
    a(f"ds_write_b32 {vr(T0)}, {vr(vNM[0])} offset:{SC_NM}")
    a(f"ds_write_b32 {vr(T0)}, {vr(vRS[0])} offset:{SC_RS}")
    a(f"ds_write_b32 {vr(T0)}, {vr(vRL[0])} offset:{SC_SD}")
    a(f"ds_write_b32 {vr(T1)}, {vr(vPC)} offset:{SC_CS}")
    a(f"ds_write_b32 {vr(T1)}, {vr(vPC+1)} offset:{SC_CS+512}")
    def trd(kb, d, nxt=False):
        if nxt: base, off = vTN, 8192 * kb
        elif kb < 4: base, off = vB2, 8192 * kb
        elif kb < 8: base, off = vB0, 8192 * kb
        else: base, off = vB1, 8192 * (kb - 8)
        return [f"ds_read_b64_tr_b16 {vr(d,2)}, {vr(base)} offset:{off}",
                f"ds_read_b64_tr_b16 {vr(d+2,2)}, {vr(base)} offset:{off+1024}"]
    FM = lambda n: 64 + 4 * (n & 3)
    a(f"s_lshl_b32 s6, s{sRG}, 7")
    a(f"v_lshl_add_u32 {vr(T1)}, {vr(vQ)}, 5, s6")
    a("s_waitcnt lgkmcnt(0)")
    a("s_barrier")
    NMt, RSt = 80, 88
    CP0, CP1 = 118, T0
    a(f"ds_read_b128 {vr(118,4)}, {vr(T4)} offset:{SC_CS}")
    a(f"ds_read_b128 {vr(NMt,4)}, {vr(T1)} offset:{SC_NM}")
    a(f"ds_read_b128 {vr(NMt+4,4)}, {vr(T1)} offset:{SC_NM+16}")
    a(f"ds_read_b128 {vr(RSt,4)}, {vr(T1)} offset:{SC_RS}")
    a(f"ds_read_b128 {vr(RSt+4,4)}, {vr(T1)} offset:{SC_RS+16}")
    a(f"ds_read_b128 {vr(T0,4)}, {vr(T4)} offset:{SC_CS+512}")
    for fa in range(2):
        a(f"ds_read_b32 {vr(vNM[fa])}, {vr(T5)} offset:{SC_NM+16*fa}")
        a(f"ds_read_b32 {vr(vRS[fa])}, {vr(T5)} offset:{SC_RS+16*fa}")
        a(f"ds_read_b32 {vr(vSD[fa])}, {vr(T5)} offset:{SC_SD+16*fa}")
    for n in range(3):
        for s in trd(4 + n, FM(n)): a(s)
    a("s_waitcnt lgkmcnt(6)")
    p = Rec()
    p(f"v_pk_add_f32 {vr(118,2)}, {vr(118,2)}, {vr(120,2)}")
    p(f"v_pk_add_f32 {vr(T0,2)}, {vr(T0,2)}, {vr(T2,2)}")
    p(f"v_add_f32 {vr(118)}, {vr(118)}, {vr(119)}")
    p(f"v_add_f32 {vr(T0)}, {vr(T0)}, {vr(T1)}")
    for tp in range(4):
        p(pkf(SR+2*tp, 118, NMt+2*tp, SR+2*tp))
        p(pkf(SI+2*tp, T0, NMt+2*tp, SI+2*tp))
    for t in range(8):
        p(f"v_mul_f32 {vr(UR(t&3) + (t>>2))}, {vr(SR+t)}, {vr(RSt+t)}")
        p(f"v_mul_f32 {vr(UI(t&3) + (t>>2))}, {vr(SI+t)}, {vr(RSt+t)}")
    cr, ci = UR(0), UI(0)
    for s_ in range(1, 4):
        nr, ni = ((T0, T2), (118, 120))[(s_ + 1) & 1]
        p(pkf(nr, vLr, cr, UR(s_)))
        p(pkf(ni, vLr, ci, UI(s_)))
        p(pkf(nr, vLi, ci, nr, True))
        p(pkf(ni, vLi, cr, ni))
        cr, ci = nr, ni
    assert (cr, ci) == (T0, T2)
    S0 = 118
    p(f"v_mov_b32 {vr(AEr)}, {vr(T0)}")
    p(f"v_mov_b32 {vr(AEi)}, {vr(T2)}")
    p(f"v_fma_f32 {vr(S0)}, {vr(L4r)}, {vr(T0)}, {vr(T1)}")
    p(f"v_fma_f32 {vr(S0+1)}, {vr(L4r)}, {vr(T2)}, {vr(T3)}")
    p(f"v_fma_f32 {vr(S0)}, -{vr(L4i)}, {vr(T2)}, {vr(S0)}")
    p(f"v_fma_f32 {vr(S0+1)}, {vr(L4i)}, {vr(T0)}, {vr(S0+1)}")
    p(f"s_lshl_b32 s6, s{sW}, 9")
    p(f"v_lshl_add_u32 {vr(T0)}, {vr(vL)}, 3, s6")
    p(f"ds_write_b64 {vr(T0)}, {vr(S0,2)} offset:{SC_LP}")
    p(f"v_lshl_add_u32 {vr(T1)}, {vr(vI)}, 3, s6")
    p(f"v_mov_b32 {vr(vP)}, 0")
    p(f"v_mov_b32 {vr(vP+1)}, 0")
    p(f"v_mul_f32 {vr(vRL[0])}, 0xbfb8aa3b, {vr(vRS[0])}")
    p(f"v_mul_f32 {vr(vRL[1])}, 0xbfb8aa3b, {vr(vRS[1])}")
    m = []
    for n in range(12):
        if n + 3 < 12: m += trd(4 + n + 3, FM(n + 3))
        m.append(f"s_waitcnt lgkmcnt({2*min(3, 11-n)})")
        c = "0" if n == 0 else vr(CSF, 4)
        m.append(f"v_mfma_f32_16x16x32_bf16 {vr(CSF,4)}, {vr(FM(n),4)}, {vr(vONE,4)}, {c}")
    merge(a, m, p.l)
    PB = 80
    a("s_waitcnt lgkmcnt(0)")
    for k in range(3):
        a(f"ds_read_b64 {vr(PB+2*k,2)}, {vr(T1)} offset:{SC_LP+128*k}")
    a(f"s_lshl_b32 s7, s{sW}, 7")
    a(f"v_lshl_add_u32 {vr(T0)}, {vr(vI)}, 3, s7")
    for k in range(3):
        a(f"s_waitcnt lgkmcnt({2-k})")
        set_exec(a, (~((1 << (16*(k+1))) - 1)) & 0xffffffffffffffff)
        cmad(a, vP, L8, vP, PB+2*k, tmp=T4)
    cmad(a, S0, L8, vP, S0)
    a(f"ds_write_b64 {vr(T0)}, {vr(S0,2)} offset:{SC_WT}")
    a("s_mov_b64 exec, -1")
    a(f"s_lshl_b32 s7, s{sH}, 9")
    a(f"v_lshl_add_u32 {vr(T0)}, {vr(vI)}, 3, s7")
    a("s_waitcnt vmcnt(0) lgkmcnt(0)")
    a(f"s_cmp_lg_u32 s{sW}, 0")
    a("s_cbranch_scc1 RDYOK")
    a("s_mov_b32 s15, 0")
    a("RDYL:")
    a(f"v_cmp_ne_u32 vcc, 1, {vr(vRDY)}")
    a("s_cmp_eq_u64 vcc, 0")
    a("s_cbranch_scc1 RDYOK")
    a("s_add_u32 s15, s15, 1")
    a("s_cmp_gt_u32 s15, 0x8000")
    a("s_cbranch_scc1 RDYOK")
    a("s_sleep 1")
    a(f"v_lshlrev_b32 {vr(T2)}, 2, {vr(vI)}")
    a(f"global_load_dword {vr(vRDY)}, {vr(T2)}, s[42:43] sc1")
    a("s_waitcnt vmcnt(0)")
    a("s_branch RDYL")
    a("RDYOK:")
    a("s_barrier")
    stamp(a)
    for k in range(4):
        a(f"ds_read_b64 {vr(PB+2*k,2)}, {vr(T0)} offset:{SC_WT+128*k}")
    for n in range(4):
        for s in trd(n, 88 + 4*(n&1) if n < 2 else 96 + 4*(n&1)): a(s)
    CK = [88, 92, 96, 100]
    a(f"v_xor_b32 {vr(vB0)}, s{sT}, {vr(vFF)}")
    a(f"v_add_u32 {vr(vB0)}, {vr(vB0)}, {vr(vFP)}")
    a(f"v_add_u32 {vr(vB1)}, 0x10000, {vr(vB0)}")
    SEQ = list(range(4, 16)) + list(range(4))
    for pos in range(4):
        for s in trd(SEQ[pos], FB(pos)): a(s)
    a(f"v_add_u32 {vr(vB2)}, 0x20000, {vr(vB0)}")
    CW = T4
    a(f"v_mov_b32 {vr(CW)}, 0")
    a(f"v_mov_b32 {vr(CW+1)}, 0")
    a(f"s_lshl_b32 s7, s{sRG}, 6")
    a(f"s_lshl_b32 s6, s{sH}, 8")
    a("s_add_u32 s7, s7, s6")
    a(f"v_lshl_add_u32 {vr(T1)}, {vr(vQ)}, 4, s7")
    vCSa = vRDY
    a(f"v_lshl_add_u32 {vr(vCSa)}, {vr(vQ)}, 4, s6")
    a("s_waitcnt lgkmcnt(8)")
    for n in range(4):
        a(f"v_mfma_f32_16x16x32_bf16 {vr(CSF,4)}, {vr(CK[n],4)}, {vr(vONE,4)}, {vr(CSF,4)}")
    for k in range(3):
        a.flush()
        a(f"s_cmp_le_u32 s{sRG}, {k}")
        a("s_cbranch_scc1 PFX_DONE")
        cmad(a, CW, L32, CW, PB+2*k, tmp=T2)
    cmad(a, PB+6, L32, CW, PB+6)
    a(f"s_lshl_b32 s6, s{sC}, 12")
    a(f"s_lshl_b32 s7, s{sG}, 8")
    a("s_add_u32 s6, s6, s7")
    a(f"s_lshl_b32 s7, s{sH}, 7")
    a("s_add_u32 s6, s6, s7")
    a(f"s_add_u32 s6, s6, {WS_E}")
    a(f"v_lshlrev_b32 {vr(T2)}, 3, {vr(vI)}")
    a(f"v_or_b32 {vr(PB+6)}, 1, {vr(PB+6)}")
    set_exec(a, 0xffff)
    a(f"buffer_store_dwordx2 {vr(PB+6,2)}, {vr(T2)}, s[{SWS}:{SWS+3}], s6 offen sc1")
    a("s_mov_b64 exec, -1")
    a("PFX_DONE:")
    cmad(a, vP, LQ, CW, vP)
    set_exec(a, 0x0001000100010001)
    a(f"ds_write_b128 {vr(T1)}, {vr(CSF,4)} offset:{SC_FC}")
    a("s_mov_b64 exec, -1")
    touchB = (f"s_mul_i32 s6, s{sJ}, 448", f"s_mul_i32 s7, s{sW}, 56", "s_add_u32 s6, s6, s7",
              f"v_min_u32 {vr(T0)}, 55, {vr(vL)}", f"v_add_u32 {vr(T0)}, s6, {vr(T0)}",
              f"v_lshlrev_b32 {vr(T0)}, 7, {vr(T0)}", f"global_load_dword {vr(63)}, {vr(T0)}, s[38:39]")
    touchC = (f"s_cmp_eq_u32 s{sH}, 0", "s_cselect_b32 s8, s26, s28", "s_cselect_b32 s9, s27, s29",
              f"s_lshl_b32 s6, s{sJ}, 7", f"s_lshl_b32 s7, s{sRG}, 5", "s_add_u32 s6, s6, s7",
              f"v_and_b32 {vr(T0)}, 31, {vr(vL)}", f"v_add_u32 {vr(T0)}, s6, {vr(T0)}",
              f"v_lshlrev_b32 {vr(T0)}, 7, {vr(T0)}", f"global_load_dword {vr(63)}, {vr(T0)}, s[8:9]")
    def epi(k, nextcs=True):
        A = 96 + 8 * (k & 1)
        o = []
        for fa in range(2):
            for j in range(2):
                r = A + 4*fa + 2*j
                o.append(pkf(r, vNM[fa], CSF+2*j, r))
        if nextcs:
            o.append(f"ds_read_b128 {vr(CSF,4)}, {vr(vCSa)} offset:{SC_FC + 64*(k+1)}")
        for fa in range(2):
            for j in range(2):
                r = A + 4*fa + 2*j
                o.append(pkm(ET+2*j, vRL[fa], r))
            for j in range(4): o.append(f"v_exp_f32 {vr(ET+j)}, {vr(ET+j)}")
            for j in range(2):
                o.append(f"v_pk_fma_f32 {vr(ET+2*j,2)}, {vr(ET+2*j,2)}, {vr(vSD[fa],2)}, {vr(vSD[fa],2)} op_sel:[0,0,0] op_sel_hi:[1,0,0]")
            for j in range(4): o.append(f"v_rcp_f32 {vr(ET+j)}, {vr(ET+j)}")
            for j in range(2):
                r = A + 4*fa + 2*j
                o.append(f"v_pk_mul_f32 {vr(r,2)}, {vr(r,2)}, {vr(ET+2*j,2)}")
            for j in range(2):
                r = A + 4*fa + 2*j
                o.append(f"v_cvt_pk_bf16_f32 {vr(PK+2*fa+j)}, {vr(r)}, {vr(r+1)}")
        o.append((f"v_permlane16_swap_b32 {vr(PK)}, {vr(PK+2)}",
                  f"v_permlane16_swap_b32 {vr(PK+1)}, {vr(PK+3)}",
                  f"buffer_store_dwordx4 {vr(PK,4)}, {vr(vH1)}, s[{SWS}:{SWS+3}], s{sST} offen offset:0 sc1",
                  f"s_add_u32 s{sST}, s{sST}, 4096"))
        return o
    def tile(k, fill, start=2):
        A = 96 + 8 * (k & 1)
        a(f"s_add_u32 s{sT}, s{sT}, 32")
        a(f"v_xor_b32 {vr(vTN)}, s{sT}, {vr(vFF)}")
        a(f"v_add_u32 {vr(vTN)}, {vr(vTN)}, {vr(vFP)}")
        main = []
        for pos in range(16):
            main += trd(SEQ[pos+4], FB(pos+4)) if pos + 4 < 16 else trd(SEQ[pos+4-16], FB(pos+4), True)
            main.append("s_waitcnt lgkmcnt(8)")
            kb = SEQ[pos]
            for fa in range(2):
                c = "0" if pos == 0 else vr(A+4*fa, 4)
                main.append(f"v_mfma_f32_16x16x32_bf16 {vr(A+4*fa,4)}, {vr(FB(pos),4)}, {vr(XA(fa,kb),4)}, {c}")
        merge(a, main, fill, start)
        a(f"v_mov_b32 {vr(vB0)}, {vr(vTN)}")
        a(f"v_add_u32 {vr(vB1)}, 0x10000, {vr(vTN)}")
        a(f"v_add_u32 {vr(vB2)}, 0x20000, {vr(vTN)}")
    sP1s, sP2s, sP1st, sP2st, sM1, sM2, sIT, sSTOP, sSL = 80, 81, 84, 83, 85, 86, 87, 90, 91
    vEo = 0
    p = Rec()
    if "B" in TOUCH: p(touchB)
    p(f"s_mul_i32 s{sST}, s{sC}, 112")
    p(f"s_mul_i32 s6, s{sG}, 7")
    p(f"s_add_u32 s{sST}, s{sST}, s6")
    p(f"s_lshl_b32 s6, s{sH}, 2")
    p(f"s_add_u32 s{sST}, s{sST}, s6")
    p(f"s_lshl_b32 s{sST}, s{sST}, 12")
    p(f"s_lshl_b32 s6, s{sRG}, 10")
    p(f"s_add_u32 s{sST}, s{sST}, s6")
    p(f"v_lshlrev_b32 {vr(vEo)}, 12, {vr(vQ)}")
    p(f"v_lshl_add_u32 {vr(vEo)}, {vr(vI)}, 3, {vr(vEo)}")
    p(f"s_lshl_b32 s11, s{sG}, 8")
    p(f"s_lshl_b32 s6, s{sH}, 7")
    p("s_add_u32 s11, s11, s6")
    p(f"s_add_u32 s11, s11, {WS_E}")
    p("s_add_u32 s12, s11, 16384")
    p("s_add_u32 s13, s11, 32768")
    p("s_add_u32 s14, s11, 49152")
    def eloads():
        return [f"buffer_load_dwordx2 {vr(EB[m_],2)}, {vr(vEo)}, s[{SWS}:{SWS+3}], s{11+m_} offen sc1" for m_ in range(4)]
    tile(0, p.l, 0)
    a("s_waitcnt lgkmcnt(8)")
    a("s_barrier")
    stamp(a)
    a(f"ds_read_b128 {vr(CSF,4)}, {vr(vCSa)} offset:{SC_FC}")
    tile(1, ([touchC] if "C" in TOUCH else []) + epi(0), 8)
    tile(2, eloads() + epi(1), 0)
    stamp(a)
    a("s_mov_b32 s15, 0")
    a("s_waitcnt vmcnt(1)")
    a("EPOLL:")
    a(f"v_mov_b32 {vr(T2)}, 1")
    for m_ in range(4):
        a(f"v_cndmask_b32 {vr(T3)}, 1, {vr(EB[m_])}, s[{VM[m_]}:{VM[m_]+1}]")
        a(f"v_and_b32 {vr(T2)}, {vr(T2)}, {vr(T3)}")
    a(f"v_cmp_eq_u32 vcc, 0, {vr(T2)}")
    a("s_cmp_eq_u64 vcc, 0")
    a("s_cbranch_scc1 EPOLL_OK")
    a("s_add_u32 s15, s15, 1")
    a("s_cmp_gt_u32 s15, 0x8000")
    a("s_cbranch_scc1 EPOLL_OK")
    a("s_sleep 1")
    for s in eloads(): a(s)
    a("s_waitcnt vmcnt(0)")
    a("s_branch EPOLL")
    a("EPOLL_OK:")
    stamp(a)
    q = Rec()
    G = T4
    q(f"v_mov_b32 {vr(G)}, 0")
    q(f"v_mov_b32 {vr(G+1)}, 0")
    for m_ in range(4):
        r = Rec()
        r(f"s_mov_b64 exec, s[{VM[m_]}:{VM[m_]+1}]")
        cmad(r, G, L512, G, EB[m_], tmp=T2)
        r("s_mov_b64 exec, -1")
        q(tuple(r.l))
    cmad(q, G, LRE, G, None, tmp=T2)
    red4(q, G, T2)
    red4(q, G+1, T3)
    cmad(q, vP, LJ, G, vP)
    OR_, OI_ = 116, 56
    q(f"v_mov_b32 {vr(T0)}, {vr(vP)}")
    q(f"v_mov_b32 {vr(T2)}, {vr(vP+1)}")
    q(f"v_fma_f32 {vr(T1)}, {vr(L4r)}, {vr(vP)}, {vr(AEr)}")
    q(f"v_fma_f32 {vr(T3)}, {vr(L4r)}, {vr(vP+1)}, {vr(AEi)}")
    q(f"v_fma_f32 {vr(T1)}, -{vr(L4i)}, {vr(vP+1)}, {vr(T1)}")
    q(f"v_fma_f32 {vr(T3)}, {vr(L4i)}, {vr(vP)}, {vr(T3)}")
    cr, ci = T0, T2
    for s_ in range(4):
        q(pkf(UR(s_), vLr, cr, UR(s_)))
        q(pkf(UI(s_), vLr, ci, UI(s_)))
        q(pkf(UR(s_), vLi, ci, UR(s_), True))
        q(pkf(UI(s_), vLi, cr, UI(s_)))
        cr, ci = UR(s_), UI(s_)
        orr, oi = ((T0, T2), (T4, vP))[s_ & 1]
        q(pkm(orr, vCr, cr))
        q(pkm(oi, vCr, ci, True))
        q(pkf(orr, vCi, ci, orr, True))
        q(pkf(oi, vCi, cr, oi, True))
        if s_ & 1:
            for hl in range(2):
                q(f"v_cvt_pk_bf16_f32 {vr(OR_ + 2*hl + (s_>>1))}, {vr(T0+hl)}, {vr(T4+hl)}")
                q(f"v_cvt_pk_bf16_f32 {vr(OI_ + 2*hl + (s_>>1))}, {vr(T2+hl)}, {vr(vP+hl)}")
    q(f"v_lshlrev_b32 {vr(T0)}, 7, {vr(vI)}")
    q(f"v_lshl_add_u32 {vr(T0)}, {vr(vQ)}, 4, {vr(T0)}")
    q(f"s_lshl_b32 s6, s{sC}, 18")
    q(f"s_lshr_b32 s7, s{sRG}, 1")
    q("s_lshl_b32 s7, s7, 17")
    q("s_add_u32 s6, s6, s7")
    q(f"s_lshl_b32 s7, s{sG}, 12")
    q("s_add_u32 s6, s6, s7")
    q(f"s_lshl_b32 s7, s{sH}, 11")
    q("s_add_u32 s6, s6, s7")
    q(f"s_and_b32 s7, s{sRG}, 1")
    q("s_lshl_b32 s7, s7, 6")
    q("s_add_u32 s6, s6, s7")
    q(f"s_add_u32 s6, s6, {WS_HH}")
    q(f"s_add_u32 s7, s6, {512*128}")
    q(f"buffer_store_dwordx4 {vr(OR_,4)}, {vr(T0)}, s[{SWS}:{SWS+3}], s6 offen sc1")
    q(f"buffer_store_dwordx4 {vr(OI_,4)}, {vr(T0)}, s[{SWS}:{SWS+3}], s7 offen sc1")
    vP1F, vP1Y, vP2, vP1, vP2Y = 10, 11, 12, 13, 20
    d = Rec()
    d(f"v_and_b32 {vr(T0)}, 7, {vr(vL)}")
    d(f"v_lshrrev_b32 {vr(T1)}, 3, {vr(vL)}")
    d(f"s_lshl_b32 s6, s{sW}, 3")
    d(f"v_add_u32 {vr(T2)}, s6, {vr(T1)}")
    d(f"v_lshlrev_b32 {vr(T3)}, 1, {vr(vQ)}")
    d(f"v_xor_b32 {vr(T3)}, {vr(T3)}, {vr(T0)}")
    d(f"s_and_b32 s7, s{sW}, 1")
    d(f"v_xor_b32 {vr(T3)}, s7, {vr(T3)}")
    d(f"v_lshlrev_b32 {vr(T3)}, 4, {vr(T3)}")
    d(f"v_lshl_add_u32 {vr(vP1Y)}, {vr(T2)}, 10, {vr(T3)}")
    d(f"v_and_b32 {vr(T3)}, 1, {vr(vQ)}")
    d(f"v_xor_b32 {vr(T4)}, {vr(T3)}, {vr(vL)}")
    d(f"s_lshr_b32 s6, s{sW}, 1")
    d("s_lshl_b32 s6, s6, 12")
    d("s_lshl_b32 s7, s7, 10")
    d("s_add_u32 s6, s6, s7")
    d(f"v_lshl_add_u32 {vr(vP1F)}, {vr(T4)}, 4, s6")
    d(f"v_lshlrev_b32 {vr(T3)}, 2, {vr(T3)}")
    d(f"v_xor_b32 {vr(T3)}, {vr(T3)}, {vr(T0)}")
    d(f"v_lshlrev_b32 {vr(T3)}, 4, {vr(T3)}")
    d(f"v_lshl_add_u32 {vr(vP2)}, {vr(T2)}, 10, {vr(T3)}")
    d(f"v_lshl_add_u32 {vr(vP2Y)}, {vr(T2)}, 7, {vr(T3)}")
    d(f"v_mov_b32 {vr(vP1)}, {vr(vP1F)}")
    srd(d, SP2, 38, 39, 1835008)
    for k in range(4): d(f"s_mov_b32 s{SP1+k}, s{SWS+k}")
    d(f"s_lshl_b32 s{sP2s}, s{sCT}, 7")
    d(f"s_mov_b32 s{sP2st}, 65536")
    d(f"s_lshl_b32 s{sM1}, s{sW}, 10")
    d(f"s_add_u32 s{sM2}, s{sM1}, 8192")
    d(f"v_lshrrev_b32 {vr(T0)}, 2, {vr(vI)}")
    d(f"v_lshlrev_b32 {vr(T0)}, 3, {vr(T0)}")
    d(f"v_and_b32 {vr(T1)}, 3, {vr(vI)}")
    d(f"v_add_u32 {vr(T0)}, {vr(T0)}, {vr(T1)}")
    d(f"s_lshl_b32 s6, s{sRG}, 5")
    d(f"v_add_u32 {vr(T0)}, s6, {vr(T0)}")
    d(f"v_lshlrev_b32 {vr(T0)}, 2, {vr(T0)}")
    d(f"v_add_u32 {vr(T5)}, {SCR}, {vr(T0)}")
    def p2_issue(slot):
        return (f"s_add_u32 m0, s{sM2}, {slot*SLOT}",
                f"buffer_load_dwordx4 {vr(vP2)}, s[{SP2}:{SP2+3}], s{sP2s} offen sc1 lds",
                f"s_add_u32 s{sP2s}, s{sP2s}, s{sP2st}")
    def put(l):
        for x in l:
            if isinstance(x, (tuple, list)):
                for y in x: a(y)
            else: a(x)
    a(f"s_cmp_lg_u32 s{sH}, 0")
    a("s_cbranch_scc1 H1_C")
    tile(3, epi(2) + q.l + d.l, 2)
    a("s_waitcnt lgkmcnt(0)")
    a("s_barrier")
    e3 = epi(3, False)
    put(e3[:12]); put(p2_issue(0)); put(e3[12:24]); put(p2_issue(1)); put(e3[24:])
    for s_ in range(2, 8): put(p2_issue(s_))
    a("s_waitcnt vmcnt(6)")
    a("s_branch X_C")
    a("H1_C:")
    put(epi(2, False)); put(q.l); put(d.l)
    a("s_waitcnt lgkmcnt(0)")
    a("s_barrier")
    a(f"ds_write_b32 {vr(T5)}, {vr(vRS[0])}")
    a(f"ds_write_b32 {vr(T5)}, {vr(vRS[1])} offset:16")
    a(f"ds_write_b32 {vr(T5)}, {vr(vNM[0])} offset:512")
    a(f"ds_write_b32 {vr(T5)}, {vr(vNM[1])} offset:528")
    for s_ in range(8): put(p2_issue(s_))
    a("s_waitcnt vmcnt(8)")
    a("X_C:")
    stamp(a)
    a("s_barrier")
    a(f"s_cmp_lg_u32 s{sW}, 0")
    a("s_cbranch_scc1 NOFLAG1")
    a(f"v_mov_b32 {vr(T0)}, 1")
    a(f"s_lshl_b32 s7, s{sC}, 7")
    a(f"s_lshl_b32 s6, s{sG}, 2")
    a("s_add_u32 s7, s7, s6")
    a(f"s_add_u32 s7, s7, {WS_F1}")
    a(f"v_mov_b32 {vr(T1)}, 0")
    a("s_mov_b64 exec, 1")
    a(f"buffer_store_dword {vr(T0)}, {vr(T1)}, s[{SWS}:{SWS+3}], s7 offen sc1")
    a("s_mov_b64 exec, -1")
    a("NOFLAG1:")
    def poll(tag, base):
        a.flush()
        a(f"s_cmp_lg_u32 s{sW}, 0")
        a(f"s_cbranch_scc1 POLL_OK{tag}")
        a(f"s_lshl_b32 s7, s{sC}, 7")
        a(f"s_add_u32 s7, s7, {base}")
        a(f"v_lshlrev_b32 {vr(T0)}, 2, {vr(vI)}")
        a("s_mov_b32 s15, 0")
        a(f"POLL{tag}:")
        a("s_add_u32 s15, s15, 1")
        a("s_cmp_gt_u32 s15, 0x8000")
        a(f"s_cbranch_scc1 POLL_OK{tag}")
        a(f"buffer_load_dword {vr(T1)}, {vr(T0)}, s[{SWS}:{SWS+3}], s7 offen sc1")
        a("s_waitcnt vmcnt(0)")
        a(f"v_cmp_eq_u32 vcc, 0, {vr(T1)}")
        a("s_cmp_eq_u64 vcc, 0")
        a(f"s_cbranch_scc1 POLL_OK{tag}")
        a("s_sleep 1")
        a(f"s_branch POLL{tag}")
        a(f"POLL_OK{tag}:")
        a("s_barrier")
    AF, AY = 128, 144
    F1 = lambda s, k: 160 + 32 * s + 8 * k
    F2 = lambda s, k: 164 + 32 * s + 8 * k
    vR1F, vR1Y, vR2F, vR2Y = 224, 225, 226, 227
    vR = [[228, 229, 230], [231, 232, 233]]
    vA = [234, 235, 236]
    a(f"s_lshr_b32 s6, s{sW}, 1")
    a("s_and_b32 s6, s6, 1")
    a(f"s_and_b32 s7, s{sW}, 1")
    a(f"v_lshrrev_b32 {vr(T1)}, 5, {vr(vL)}")
    a(f"v_bfe_u32 {vr(T2)}, {vr(vL)}, 3, 1")
    a(f"v_and_b32 {vr(T3)}, 31, {vr(vL)}")
    a(f"v_lshl_add_u32 {vr(T0)}, {vr(T3)}, 1, {vr(T1)}")
    a(f"v_xor_b32 {vr(T0)}, {vr(T0)}, {vr(T2)}")
    a(f"s_lshl_b32 s8, s{sH}, 12")
    a("s_lshl_b32 s9, s6, 10")
    a("s_add_u32 s8, s8, s9")
    a(f"v_lshl_add_u32 {vr(vR1F)}, {vr(T0)}, 4, s8")
    a(f"s_lshl_b32 s8, s{sH}, 2")
    a(f"v_or_b32 {vr(T0)}, s8, {vr(T1)}")
    a(f"v_and_b32 {vr(T4)}, 6, {vr(vL)}")
    a(f"v_xor_b32 {vr(T0)}, {vr(T0)}, {vr(T4)}")
    a(f"v_xor_b32 {vr(T0)}, {vr(T0)}, {vr(T2)}")
    a(f"v_lshlrev_b32 {vr(T0)}, 4, {vr(T0)}")
    a(f"v_lshl_add_u32 {vr(T0)}, {vr(T3)}, 7, {vr(T0)}")
    a("s_lshl_b32 s9, s7, 12")
    a(f"v_add_u32 {vr(vR1Y)}, s9, {vr(T0)}")
    a(f"v_bfe_u32 {vr(T0)}, {vr(vL)}, 2, 2")
    a(f"v_lshl_add_u32 {vr(T1)}, {vr(T1)}, 3, {vr(T0)}")
    a(f"v_lshlrev_b32 {vr(T1)}, 7, {vr(T1)}")
    a(f"v_bfe_u32 {vr(T0)}, {vr(vL)}, 4, 1")
    a(f"v_lshlrev_b32 {vr(T0)}, 1, {vr(T0)}")
    a(f"v_bfe_u32 {vr(T3)}, {vr(vL)}, 1, 1")
    a(f"v_add_u32 {vr(T0)}, {vr(T0)}, {vr(T3)}")
    a(f"v_lshlrev_b32 {vr(T3)}, 2, {vr(T2)}")
    a(f"v_xor_b32 {vr(T2)}, {vr(T0)}, {vr(T3)}")
    a(f"v_and_b32 {vr(T3)}, 1, {vr(vL)}")
    a(f"v_lshl_add_u32 {vr(T1)}, {vr(T3)}, 3, {vr(T1)}")
    a(f"s_lshl_b32 s8, s{sH}, 12")
    a(f"s_add_u32 s8, s8, 8192")
    a(f"v_add_u32 {vr(T1)}, s8, {vr(T1)}")
    a("s_lshl_b32 s8, s7, 2")
    a("s_lshl_b32 s9, s6, 2")
    a(f"v_xor_b32 {vr(T3)}, s8, {vr(T2)}")
    a(f"v_lshl_add_u32 {vr(vR2F)}, {vr(T3)}, 4, {vr(T1)}")
    a(f"v_xor_b32 {vr(T3)}, s9, {vr(T2)}")
    a(f"v_lshl_add_u32 {vr(vR2Y)}, {vr(T3)}, 4, {vr(T1)}")
    def set_reads(hf, ty):
        if ty == "F":
            a(f"v_mov_b32 {vr(vR[hf][0])}, {vr(vR1F)}")
            a(f"v_add_u32 {vr(vR[hf][1])}, 0x800, {vr(vR1F)}")
            a(f"v_mov_b32 {vr(vR[hf][2])}, {vr(vR2F)}")
        else:
            a(f"v_mov_b32 {vr(vR[hf][0])}, {vr(vR1Y)}")
            a(f"v_xor_b32 {vr(vR[hf][1])}, 32, {vr(vR1Y)}")
            a(f"v_mov_b32 {vr(vR[hf][2])}, {vr(vR2Y)}")
    set_reads(0, "F"); set_reads(1, "F")
    for r in range(32): a(f"v_mov_b32 {vr(AF+r)}, 0")
    a(f"s_mov_b32 s{sIT}, 0")
    a(f"s_mov_b32 s{sSL}, 0")
    a(f"s_mul_i32 s{sP1s}, s{sC}, {112*4096}")
    a(f"s_lshl_b32 s6, s{sHH}, 11")
    a(f"s_add_u32 s{sP1s}, s{sP1s}, s6")
    a(f"s_mov_b32 s{sP1st}, 16384")
    stamp(a)
    poll("H1", WS_F1)
    stamp(a)
    if "D" in TOUCH:
        a(f"s_mul_i32 s6, s{sW}, 28")
        a(f"v_min_u32 {vr(T0)}, 27, {vr(vL)}")
        a(f"v_add_u32 {vr(T0)}, s6, {vr(T0)}")
        a(f"v_lshrrev_b32 {vr(T1)}, 4, {vr(T0)}")
        a(f"v_and_b32 {vr(T0)}, 15, {vr(T0)}")
        a(f"v_lshlrev_b32 {vr(T0)}, 7, {vr(T0)}")
        a(f"v_lshl_add_u32 {vr(T0)}, {vr(T1)}, 12, {vr(T0)}")
        a(f"s_mul_i32 s6, s{sCT}, {14*4096}")
        a(f"s_add_u32 s6, s6, s{sP1s}")
    for s_ in range(8):
        a(f"s_add_u32 m0, s{sM1}, {s_*SLOT}")
        a(f"buffer_load_dwordx4 {vr(vP1)}, s[{SP1}:{SP1+3}], s{sP1s} offen sc1 lds")
        a(f"s_add_u32 s{sP1s}, s{sP1s}, s{sP1st}")
        if s_ == 1 and "D" in TOUCH:
            a(f"buffer_load_dword {vr(63)}, {vr(T0)}, s[{SWS}:{SWS+3}], s6 offen sc1")
    def rd_list(st, A):
        o = []
        for k in range(4):
            off = 16384 * (k >> 1)
            o.append(f"ds_read_b128 {vr(F1(st,k),4)}, {vr(A[k&1])} offset:{off}")
            o.append(f"ds_read_b64_tr_b16 {vr(F2(st,k),2)}, {vr(A[2])} offset:{off + 2048*(k&1)}")
            o.append(f"ds_read_b64_tr_b16 {vr(F2(st,k)+2,2)}, {vr(A[2])} offset:{off + 2048*(k&1) + 512}")
        return o
    a(f"s_waitcnt vmcnt({7 if 'D' in TOUCH else 6})")
    a("s_barrier")
    stamp(a)
    for s in rd_list(0, vR[0]): a(s)
    cur_it = [0]
    def run(stop):
        ty = "F" if cur_it[0] < 14 else "Y"
        a(f"s_mov_b32 s{sSTOP}, {stop}")
        call(f"P{ty}{cur_it[0] & 1}")
        cur_it[0] = stop
    a("s_waitcnt vmcnt(4)")
    run(1)
    a("s_waitcnt vmcnt(6)")
    run(EV_TE)
    if "E" in TOUCH:
        a(f"s_lshl_b32 s6, s{sCT}, 7")
        a(f"s_lshl_b32 s7, s{sW}, 4")
        a("s_add_u32 s6, s6, s7")
        a(f"v_add_u32 {vr(T0)}, s6, {vr(vI)}")
        a(f"v_lshlrev_b32 {vr(T0)}, 7, {vr(T0)}")
        a(f"s_lshl_b32 s6, s{sC}, 18")
        a(f"s_lshl_b32 s7, s{sHH}, 17")
        a("s_add_u32 s6, s6, s7")
        a(f"s_add_u32 s6, s6, {WS_HH}")
        a(f"buffer_load_dword {vr(63)}, {vr(T0)}, s[{SWS}:{SWS+3}], s6 offen sc1")
    run(10)
    stamp(a)
    srd(a, SP1, 26, 27, 524288)
    for k in range(4): a(f"s_mov_b32 s{SP2+k}, s{SWS+k}")
    a(f"v_mov_b32 {vr(vP1)}, {vr(vP1Y)}")
    a(f"v_mov_b32 {vr(vP2)}, {vr(vP2Y)}")
    a(f"s_lshl_b32 s{sP1s}, s{sCT}, 16")
    a(f"s_mov_b32 s{sP1st}, 128")
    a(f"s_lshl_b32 s6, s{sC}, 18")
    a(f"s_lshl_b32 s7, s{sHH}, 17")
    a("s_add_u32 s6, s6, s7")
    a(f"s_add_u32 s{sP2s}, s6, {WS_HH}")
    a(f"s_mov_b32 s{sP2st}, 8192")
    run(13)
    set_reads(1, "Y")
    run(14)
    stamp(a)
    set_reads(0, "Y")
    srd(a, SP1, 28, 29, 524288)
    a(f"s_lshl_b32 s{sP1s}, s{sCT}, 16")
    XV = 240; vXo, vOo, vDk, vSo = 237, 238, 239, 19
    srd(a, SO, 40, 41, 4194304)
    a(f"s_lshr_b32 s6, s{sW}, 1")
    a("s_and_b32 s6, s6, 1")
    a("s_lshl_b32 s6, s6, 5")
    a(f"s_lshl_b32 s7, s{sH}, 4")
    a("s_add_u32 s6, s6, s7")
    a(f"s_lshl_b32 s7, s{sHH}, 6")
    a("s_add_u32 s6, s6, s7")
    a(f"v_lshrrev_b32 {vr(T1)}, 5, {vr(vL)}")
    a(f"v_lshl_add_u32 {vr(T1)}, {vr(T1)}, 2, s6")
    a(f"v_lshlrev_b32 {vr(vSo)}, 2, {vr(T1)}")
    a(f"v_add_u32 {vr(vSo)}, {SCR}, {vr(vSo)}")
    a(f"s_lshl_b32 s7, s{sC}, 7")
    a(f"v_add_u32 {vr(T1)}, s7, {vr(T1)}")
    a(f"s_and_b32 s7, s{sW}, 1")
    a("s_lshl_b32 s7, s7, 5")
    a(f"s_lshl_b32 s8, s{sCT}, 6")
    a("s_add_u32 s7, s7, s8")
    a(f"v_and_b32 {vr(T0)}, 31, {vr(vL)}")
    a(f"v_add_u32 {vr(T0)}, s7, {vr(T0)}")
    a(f"v_lshl_add_u32 {vr(T1)}, {vr(T1)}, 9, {vr(T0)}")
    a(f"v_lshlrev_b32 {vr(vXo)}, 1, {vr(T1)}")
    a(f"v_lshlrev_b32 {vr(vOo)}, 2, {vr(T1)}")
    a(f"v_lshlrev_b32 {vr(T0)}, 1, {vr(T0)}")
    a(f"global_load_ushort {vr(vDk)}, {vr(T0)}, s[32:33]")
    for ii in range(8):
        ro = 8 * (ii >> 2) + (ii & 3)
        if ro * 1024 < 4096:
            a(f"buffer_load_ushort {vr(XV+ii)}, {vr(vXo)}, s[{SX}:{SX+3}], 0 offen offset:{ro*1024}")
        else:
            a(f"s_mov_b32 s9, {ro*1024}")
            a(f"buffer_load_ushort {vr(XV+ii)}, {vr(vXo)}, s[{SX}:{SX+3}], s9 offen")
    run(18)
    a(f"s_mov_b32 s{SP1+2}, 0")
    a(f"s_mov_b32 s{SP2+2}, 0")
    run(22)
    stamp(a)
    a("s_waitcnt vmcnt(0) lgkmcnt(0)")
    a("s_barrier")
    a(f"s_lshl_b32 s6, s{sW}, 12")
    a(f"v_lshl_add_u32 {vr(T0)}, {vr(vL)}, 4, s6")
    a(f"s_xor_b32 s7, s{sW}, 4")
    a("s_lshl_b32 s7, s7, 12")
    a(f"v_lshl_add_u32 {vr(T1)}, {vr(vL)}, 4, s7")
    a.flush()
    a(f"s_cmp_eq_u32 s{sH}, 1")
    a("s_cbranch_scc1 RED_H1")
    for k, r in enumerate((AF+8, AF+12, AY+8, AY+12)):
        a(f"ds_write_b128 {vr(T0)}, {vr(r,4)} offset:{1024*k}")
    a("s_branch RED_X")
    a("RED_H1:")
    for k, r in enumerate((AF, AF+4, AY, AY+4)):
        a(f"ds_write_b128 {vr(T0)}, {vr(r,4)} offset:{1024*k}")
    for k in range(8):
        a(f"v_mov_b32 {vr(AF+k)}, {vr(AF+8+k)}")
        a(f"v_mov_b32 {vr(AY+k)}, {vr(AY+8+k)}")
    a("RED_X:")
    a("s_waitcnt lgkmcnt(0)")
    a("s_barrier")
    RB = 160
    for k in range(4):
        a(f"ds_read_b128 {vr(RB+4*k,4)}, {vr(T1)} offset:{1024*k}")
    STt = 176
    a(f"ds_read_b128 {vr(STt,4)}, {vr(vSo)}")
    a(f"ds_read_b128 {vr(STt+4,4)}, {vr(vSo)} offset:32")
    a(f"ds_read_b128 {vr(STt+8,4)}, {vr(vSo)} offset:512")
    a(f"ds_read_b128 {vr(STt+12,4)}, {vr(vSo)} offset:544")
    a("s_waitcnt lgkmcnt(4)")
    for k in range(8):
        a(f"v_add_f32 {vr(AF+k)}, {vr(AF+k)}, {vr(RB+k)}")
        a(f"v_add_f32 {vr(AY+k)}, {vr(AY+k)}, {vr(RB+8+k)}")
    Fv = list(range(AF, AF+8)); Tm = list(range(64, 72))
    for s in silu_ops(Fv, Tm): a(s)
    for v in Fv: a(f"v_cvt_pk_bf16_f32 {vr(v)}, 0, {vr(v)}")
    a("s_waitcnt vmcnt(0) lgkmcnt(0)")
    a(f"v_lshlrev_b32 {vr(vDk)}, 16, {vr(vDk)}")
    for ii in range(8):
        x = XV + ii; t = 64 + ii; nm = STt + 8 + ii; rs = STt + ii
        a(f"v_lshlrev_b32 {vr(x)}, 16, {vr(x)}")
        a(f"v_add_f32 {vr(t)}, {vr(x)}, {vr(nm)}")
        a(f"v_cvt_pk_bf16_f32 {vr(t)}, 0, {vr(t)}")
        a(f"v_mul_f32 {vr(t)}, {vr(t)}, {vr(rs)}")
        a(f"v_cvt_pk_bf16_f32 {vr(t)}, 0, {vr(t)}")
        a(f"v_mul_f32 {vr(t)}, {vr(t)}, {vr(vDk)}")
        a(f"v_cvt_pk_bf16_f32 {vr(t)}, 0, {vr(t)}")
        a(f"v_fma_f32 {vr(t)}, 2.0, {vr(AY+ii)}, {vr(t)}")
        a(f"v_mul_f32 {vr(t)}, {vr(t)}, {vr(AF+ii)}")
        a(f"v_add_f32 {vr(t)}, {vr(t)}, {vr(x)}")
        ro = 8 * (ii >> 2) + (ii & 3)
        if ro * 2048 < 4096:
            a(f"buffer_store_dword {vr(t)}, {vr(vOo)}, s[{SO}:{SO+3}], 0 offen offset:{ro*2048}")
        else:
            a(f"s_mov_b32 s9, {ro*2048}")
            a(f"buffer_store_dword {vr(t)}, {vr(vOo)}, s[{SO}:{SO+3}], s9 offen")
    stamp(a)
    if STAMPS:
        a("s_waitcnt vmcnt(0)")
        stamp(a)
        a(f"s_lshl_b32 s6, s2, 3")
        a(f"s_add_u32 s6, s6, s{sW}")
        a("s_lshl_b32 s6, s6, 8")
        a(f"s_add_u32 s6, s6, {WS_ST}")
        a(f"v_lshlrev_b32 {vr(T0)}, 2, {vr(vL)}")
        a(f"buffer_store_dword {vr(VST)}, {vr(T0)}, s[{SWS}:{SWS+3}], s6 offen")
        a(f"s_add_u32 s6, s6, 0x80000")
        a(f"buffer_store_dword {vr(248)}, {vr(T0)}, s[{SWS}:{SWS+3}], s6 offen")
    a("K_END:")
    a("s_endpgm")

    def rawlabel(n):
        a.hist = []
        a.lines.append(n + ":")
    for ty in "FY":
        for hf in range(2):
            cur, nxt = hf, 1 - hf
            rawlabel(f"P{ty}{hf}")
            a(f"s_mov_b32 s6, s{sSL}")
            a(f"s_add_u32 s{sSL}, s{sSL}, {2*SLOT}")
            a(f"s_and_b32 s{sSL}, s{sSL}, {SLOT*NSLOT-1}")
            for k in range(3):
                a(f"v_add_u32 {vr(vA[k])}, s{sSL}, {vr(vR[hf][k])}")
            a(f"s_add_u32 s7, s{sM1}, s6")
            a(f"s_add_u32 s{sIT}, s{sIT}, 1")
            a("s_waitcnt vmcnt(8) lgkmcnt(0)")
            a("s_barrier")
            if STAMPS:
                a("s_memtime s[98:99]")
                a("s_waitcnt lgkmcnt(0)")
                a(f"s_mov_b32 m0, s{sIT}")
                a("s_nop 0")
                a(f"v_writelane_b32 {vr(248)}, s98, m0")
            rl = rd_list(nxt, vA)
            for k in range(4):
                if ty == "F":
                    a(f"v_mfma_f32_32x32x16_bf16 {vr(AF,16)}, {vr(F1(cur,k),4)}, {vr(F2(cur,k),4)}, {vr(AF,16)}")
                else:
                    a(f"v_mfma_f32_32x32x16_bf16 {vr(AY,16)}, {vr(F2(cur,k),4)}, {vr(F1(cur,k),4)}, {vr(AY,16)}")
                for s in rl[3*k:3*k+3]: a(s)
                if k & 1 == 0:
                    a(f"s_add_u32 m0, s7, {8192 + 16384*(k>>1)}")
                    a(f"buffer_load_dwordx4 {vr(vP2)}, s[{SP2}:{SP2+3}], s{sP2s} offen sc1 lds")
                    a(f"s_add_u32 s{sP2s}, s{sP2s}, s{sP2st}")
                else:
                    a(f"s_add_u32 m0, s7, {16384*(k>>1)}")
                    a(f"buffer_load_dwordx4 {vr(vP1)}, s[{SP1}:{SP1+3}], s{sP1s} offen sc1 lds")
                    a(f"s_add_u32 s{sP1s}, s{sP1s}, s{sP1st}")
            a(f"s_cmp_lt_u32 s{sIT}, s{sSTOP}")
            if hf == 0:
                a(f"s_cbranch_scc0 PRET")
            else:
                a(f"s_cbranch_scc1 P{ty}0")
                if ty == "F": a("s_branch PRET")
    rawlabel("PRET")
    a("s_nop 7")
    a("s_nop 7")
    a(f"s_setpc_b64 s[{sRET}:{sRET+1}]")
    a("CODE_END:")
    return a

def kd(name, vgpr, accum, sgpr=102):
    return f""".section .rodata,"a"
.p2align 6
.amdhsa_kernel {name}
  .amdhsa_next_free_vgpr {vgpr}
  .amdhsa_next_free_sgpr {sgpr}
  .amdhsa_accum_offset {accum}
  .amdhsa_group_segment_fixed_size 0
  .amdhsa_kernarg_size 120
  .amdhsa_user_sgpr_count 2
  .amdhsa_user_sgpr_kernarg_segment_ptr 1
  .amdhsa_system_sgpr_workgroup_id_x 1
.end_amdhsa_kernel
"""

def main(out):
    ref = open("cdna_kernels/" + NAME + ".s.ref").read().split("\n")
    hdr = [l for l in ref if l.startswith(";") and "@launch" not in l and "Override" not in l and "grid=ceil" not in l]
    k = gen()
    kn = NAME + "_kernel"
    s = "\n".join(hdr) + "\n"
    s += "; @launch grid=(256,1,1) block=(512,1,1) lds=163840\n"
    s += '.amdgcn_target "amdgcn-amd-amdhsa--gfx950"\n.text\n'
    s += f".globl {kn}\n.p2align 8\n.type {kn},@function\n{kn}:\nmain_kernel:\n"
    s += k.text()
    s += kd(kn, 256, 256)
    open(out, "w").write(s)
    print("instrs", k.count, "bytes", len(s), "stamps", _nst[0])

if __name__ == "__main__":
    if "--stamps" in sys.argv:
        STAMPS = True; sys.argv.remove("--stamps")
    main(sys.argv[1] if len(sys.argv) > 1 else "g1.s")
```
